```python
import torch

def _softmax(x, axis=-1):
    return torch.softmax(x, dim=axis)
def _gelu(x):
    return torch.nn.functional.gelu(x, approximate="tanh")
def _silu(x):
    return torch.nn.functional.silu(x)
def _sigmoid(x):
    return torch.sigmoid(x)
def _layernorm(x, axis=-1, eps=1e-5):
    m = x.mean(dim=axis, keepdim=True)
    v = x.var(dim=axis, keepdim=True, unbiased=False)
    return (x - m) / torch.sqrt(v + eps)
def _scatter_add(tgt, idx, src, axis=0):
    return tgt.clone().index_add_(axis, idx, src)
def _segment_sum(src, seg, n):
    out = torch.zeros((n,) + src.shape[1:], dtype=src.dtype)
    return out.index_add_(0, seg, src)
def _pad(x, pw):
    flat = tuple(v for pair in reversed(pw) for v in pair)
    return torch.nn.functional.pad(x, flat)

kernel_name = 'standalone__kv_cache_quant_int4_int2_kv_with_per_channel_or_per_token_scales__decode'

def setup_inputs():

    _w = (lambda a: (lambda t: t.to(torch.bfloat16) if t.is_floating_point() else t)(torch.as_tensor(a)))
    B = 1
    Sq = 1
    Skv = 32768
    Hq = 32
    Hkv = 32
    Dh = 192
    bits = 3
    G = -1
    if G <= 0 or G >= Skv:
        G = max(1, Skv // 2)
    Skv = (Skv // G) * G
    ngk = Skv // G
    qmax = (1 << bits) - 1
    return {
        "q": _w((lambda *s: torch.randn(*s, dtype=torch.bfloat16) * 3.2)(B, Hq, Sq, Dh)),
        "qk": _w(torch.randint(0, qmax + 1, (B, Hkv, Skv, Dh)).to(torch.int32)),
        "qv": _w(torch.randint(0, qmax + 1, (B, Hkv, Skv, Dh)).to(torch.int32)),
        "k_scales": _w(torch.abs((lambda *s: torch.randn(*s, dtype=torch.bfloat16) * 3.2)(B, Hkv, ngk, Dh)) * 0.05 + 0.02),
        "k_zeros": _w((lambda *s: torch.randn(*s, dtype=torch.bfloat16) * 3.2)(B, Hkv, ngk, Dh) + float(qmax) / 2.0),
        "v_scales": _w(torch.abs((lambda *s: torch.randn(*s, dtype=torch.bfloat16) * 0.05)(B, Hkv, Skv, 1)) * 0.05 + 0.02),
        "v_zeros": _w((lambda *s: torch.randn(*s, dtype=torch.bfloat16) * 0.05)(B, Hkv, Skv, 1) + float(qmax) / 2.0),
    }

def reference(q, qk, qv, k_scales, k_zeros, v_scales, v_zeros):
    B, Hq, Sq, Dh = q.shape
    Hkv, Skv = qk.shape[1], qk.shape[2]
    ngk = k_scales.shape[2]
    G = Skv // ngk
    ks = (lambda x, n, axis: torch.repeat_interleave(x, n, dim=axis))(k_scales, G, axis=2)
    kz = (lambda x, n, axis: torch.repeat_interleave(x, n, dim=axis))(k_zeros, G, axis=2)
    k = ((lambda x, dt: x.to(dt))(qk, q.dtype) - kz) * ks
    v = ((lambda x, dt: x.to(dt))(qv, q.dtype) - v_zeros) * v_scales
    rep = Hq // Hkv
    if rep > 1:
        k = (lambda x, n, axis: torch.repeat_interleave(x, n, dim=axis))(k, rep, axis=1)
        v = (lambda x, n, axis: torch.repeat_interleave(x, n, dim=axis))(v, rep, axis=1)
    scale = float(Dh) ** -0.5
    logits = torch.einsum("bhqd,bhkd->bhqk", q, k) * scale
    p = _softmax(logits, axis=-1)
    o = torch.einsum("bhqk,bhkd->bhqd", p, v)
    return o
```

```python
import math, sys, struct
from gen_kern import KN, HDRC, f2u
def gen(kn=KN+"_kernel", GW=8, ms=4, U=8, dynu=320, SH=None, minn=1, maxn=8, pat=2, ts=0, ldsmin=0, pol="nt", spol="sc1", dyn=True, G=256, nv=256, nosc=False, noat=False):
    NR=G//GW; HPW=GW*32//G; assert 1<=HPW<=4 and GW<=32
    R=HPW*2048; TS=GW*ms
    assert 1024%TS==0 and ms<=U and maxn<=U
    if not dyn: dynu=0
    NST=(R-dynu)//TS; D0=NST*TS; assert R-D0<=1024 and NST>=4
    if SH is None: SH=int(math.log2(GW))+2
    NS=2*HPW; SPW=max(1,NS//4)
    SLOT=800; PART=NS*1536; XCH=PART+HPW*4*SLOT+256; LDS=max(XCH+16, ldsmin)
    PB=4<<20; CB=8<<20
    NREC=805306368
    F=f2u(192**-0.5*math.log2(math.e))
    o=[]; a=o.append
    L=lambda s: f"L_{s}_{kn}"
    def tsw():
        a("s_getreg_b32 s4, hwreg(HW_REG_XCC_ID)\ns_lshl_b32 s5, s2, 2\ns_add_u32 s5, s5, s3\ns_lshl_b32 s5, s5, 4\ns_waitcnt lgkmcnt(0)")
        a("v_mov_b32 v4, s90\nv_mov_b32 v5, s92\nv_mov_b32 v6, s4\nv_mov_b32 v7, s2\nv_mov_b32 v8, s5")
        a("s_mov_b64 exec, 1\nglobal_store_dwordx4 v8, v[4:7], s[50:51]\ns_mov_b64 exec, -1")
    a(f"s_cmp_ge_u32 s2, {G}\ns_cbranch_scc1 {L('exit')}")
    a("s_load_dwordx16 s[32:47], s[0:1], 0\ns_load_dwordx4 s[48:51], s[0:1], 64")
    if ts: a("s_memrealtime s[90:91]")
    a("v_lshrrev_b32 v1, 6, v0\nv_and_b32 v3, 15, v0\nv_readfirstlane_b32 s3, v1")
    a("v_bfe_u32 v5, v0, 4, 2\nv_and_b32 v100, 63, v0")
    a("v_mul_u32_u24 v1, 0x300, v5\nv_lshlrev_b32 v101, 4, v3\nv_add_u32 v1, v1, v101")
    a("v_lshlrev_b32 v2, 1, v5")
    a("v_lshlrev_b32 v102, 2, v5\nv_add_u32 v103, v101, v102")
    a("v_lshlrev_b32 v104, 3, v100\nv_lshlrev_b32 v105, 4, v100")
    if pat==2: a(f"s_lshr_b32 s24, s2, {int(math.log2(GW))}\ns_and_b32 s25, s2, {GW-1}")
    else: a(f"s_and_b32 s24, s2, {NR-1}\ns_lshr_b32 s25, s2, {int(math.log2(NR))}")
    a(f"s_mul_i32 s60, s24, {HPW*32768}\ns_lshl_b32 s4, s3, 2\ns_add_u32 s60, s60, s4")
    a(f"s_mul_i32 s58, s25, {ms}\ns_lshl_b32 s4, s58, 4\ns_add_u32 s4, s4, s60\ns_mul_i32 s26, s4, 768\ns_lshl_b32 s4, s4, 1")
    a(f"v_min_u32 v107, {ms-1}, v3\nv_lshl_add_u32 v107, v107, 5, v2\nv_add_u32 v107, s4, v107")
    a(f"s_add_u32 s58, s58, {TS}\ns_mov_b32 s59, {ms}\ns_mov_b32 s55, {ms}\ns_mov_b32 s57, {NREC}\ns_mov_b32 s61, 0\ns_mov_b32 s62, 0\ns_mov_b32 s63, {XCH}\ns_mov_b32 s72, 0")
    if NS>=4: a(f"s_mul_i32 s30, s3, {SPW}")
    else: a(f"s_and_b32 s30, s3, {NS-1}")
    a(f"s_mul_i32 s4, s24, {NS}\ns_add_u32 s4, s4, s30\ns_lshr_b32 s5, s4, 1\ns_mul_i32 s4, s4, 384\ns_mul_i32 s5, s5, 384")
    a("v_add_u32 v6, s4, v104\nv_add_u32 v7, s5, v104")
    a("v_mov_b32 v82, 0\nv_mov_b32 v83, 0\nv_mov_b32 v80, 0\nv_mov_b32 v81, 0\nv_mov_b32 v41, 0")
    a("s_waitcnt lgkmcnt(0)")
    a("s_mov_b32 exec_hi, 0xffff")
    nq=(SPW+1)//2
    for i in range(nq): a(f"global_load_dwordx2 v[{110+2*i}:{111+2*i}], v7, s[32:33] offset:{i*384}")
    for i in range(SPW):
        a(f"global_load_dwordx2 v[{120+2*i}:{121+2*i}], v6, s[38:39] offset:{i*384}")
        a(f"global_load_dwordx2 v[{130+2*i}:{131+2*i}], v6, s[40:41] offset:{i*384}")
    a("s_mov_b32 exec_hi, -1")
    for d,s,n in ((8,34,NREC),(12,36,NREC),(16,42,2097152),(20,44,2097152)):
        a(f"s_mov_b32 s{d}, s{s}\ns_and_b32 s{d+1}, s{s+1}, 0xffff\ns_mov_b32 s{d+2}, {n}\ns_mov_b32 s{d+3}, 0x20000")
    a(f"buffer_load_short_d16_hi v80, v107, s[16:19], 0 offen nt\nbuffer_load_short_d16_hi v81, v107, s[20:23], 0 offen nt")
    def ld(slot, soff):
        srd="s[8:11]" if slot<3 else "s[12:15]"
        return f"buffer_load_dwordx4 v[{4+4*slot}:{7+4*slot}], v1, {srd}, {soff} offen offset:{(slot%3)*256} {pol}"
    for s in range(6): a(ld(s,"s26"))
    a("v_mov_b32 v61, 0xff800000\nv_mov_b32 v62, 0\nv_mov_b32 v63, 0")
    for i in range(12): a(f"v_mov_b32 v{68+i}, 0")
    a(f"s_mov_b32 s6, 0x{F:08x}\ns_mul_i32 s4, s30, 1536\nv_add_u32 v106, s4, v105")
    a(f"s_lshl_b32 s4, s24, 8\ns_add_u32 s4, s4, {CB}\ns_add_u32 s66, s50, s4\ns_addc_u32 s67, s51, 0")
    a(f"s_lshl_b32 s4, s24, 2\ns_add_u32 s4, s4, 128\ns_add_u32 s70, s48, s4\ns_addc_u32 s71, s49, 0")
    a("s_waitcnt vmcnt(8)")
    a("s_mov_b32 exec_hi, 0xffff")
    def unp(d,s): return f"v_lshlrev_b32 v{d}, 16, v{s}\nv_and_b32 v{d+1}, 0xffff0000, v{s}\nv_lshlrev_b32 v{d+2}, 16, v{s+1}\nv_and_b32 v{d+3}, 0xffff0000, v{s+1}"
    for i in range(SPW):
        a(unp(140,110+2*(i//2))); a(unp(144,120+2*i)); a(unp(148,130+2*i))
        c=152+8*i
        for j in range(4): a(f"v_mul_f32 v{144+j}, v{140+j}, v{144+j}")
        for j in range(4): a(f"v_mul_f32 v{c+j}, s6, v{144+j}")
        for j in range(4): a(f"v_mul_f32_e64 v{c+4+j}, -v{c+j}, v{148+j}")
        a(f"ds_write_b128 v106, v[{c}:{c+3}] offset:{i*1536}\nds_write_b128 v106, v[{c+4}:{c+7}] offset:{i*1536+768}")
    a("s_mov_b32 exec_hi, -1")
    a("s_waitcnt lgkmcnt(0)\ns_barrier")
    a(f"s_mul_i32 s31, s3, {SLOT}\ns_add_u32 s31, s31, {PART}")
    a(f"{L('coef')}:")
    a("s_mul_i32 s30, s62, 1536\nv_add_u32 v84, s30, v101")
    for j in range(3): a(f"ds_read_b128 v[{28+4*j}:{31+4*j}], v84 offset:{j*256}")
    for j in range(3): a(f"ds_read_b128 v[{88+4*j}:{91+4*j}], v84 offset:{768+j*256}")
    a("s_waitcnt lgkmcnt(0)")
    a("v_pk_add_f32 v[88:89], v[88:89], v[90:91]\nv_pk_add_f32 v[92:93], v[92:93], v[94:95]\nv_pk_add_f32 v[96:97], v[96:97], v[98:99]")
    a("v_pk_add_f32 v[88:89], v[88:89], v[92:93]\nv_pk_add_f32 v[88:89], v[88:89], v[96:97]\nv_add_f32 v40, v88, v89")
    a(f"{L('tile')}:")
    a("s_lshl_b32 s4, s58, 4\ns_add_u32 s4, s4, s60\ns_mul_i32 s54, s4, 768\ns_lshl_b32 s4, s4, 1\ns_sub_u32 s5, s59, 1")
    a("s_cmp_lg_u32 s59, 0\ns_cselect_b32 s56, s57, 0\ns_cselect_b32 s4, s4, s57")
    a("v_min_u32 v107, s5, v3\nv_lshl_add_u32 v107, v107, 5, v2\nv_add_u32 v107, s4, v107")
    if not nosc: a("buffer_load_short_d16_hi v82, v107, s[16:19], 0 offen nt\nbuffer_load_short_d16_hi v83, v107, s[20:23], 0 offen nt")
    a(f"s_cmp_lg_u32 s3, 0\ns_cbranch_scc1 {L('it0')}")
    if dyn:
        a(f"s_cmp_lt_u32 s61, {NST-2}\ns_cbranch_scc1 {L('w0s')}")
        a(f"s_cmp_eq_u32 s59, 0\ns_cbranch_scc1 {L('it0')}")
        a(f"s_sub_u32 s65, {R}, s58\ns_lshr_b32 s65, s65, {SH}\ns_max_u32 s65, s65, {minn}\ns_min_u32 s65, s65, {maxn}\ns_mov_b32 s64, s65")
        a(f"s_atomic_add s64, s[66:67], 0 glc\ns_branch {L('it0')}")
        a(f"{L('w0s')}:")
    a(f"s_cmp_eq_u32 s61, 0\ns_cselect_b32 s64, 1, 0\ns_cbranch_scc1 {L('w0a')}\ns_cmp_lg_u32 s61, {NST-3}\ns_cbranch_scc1 {L('it0')}")
    a(f"{L('w0a')}:\ns_atomic_add s64, s[70:71], 0 glc")
    a(f"{L('it0')}:")
    def it(u):
        tag=f"s{u}"
        w=f"s_waitcnt vmcnt({7 if (u==0 and not nosc) else 5})"
        if u<U-1:
            a(f"s_add_u32 s27, s26, {(u+1)*12288}\ns_cmp_eq_u32 s55, {u+1}\ns_cselect_b32 s27, s54, s27\ns_cselect_b32 s10, s56, s57\ns_cselect_b32 s14, s56, s57")
        else:
            a("s_mov_b32 s27, s54\ns_mov_b32 s10, s56\ns_mov_b32 s14, s56")
        for s in range(3):
            a(w)
            for i in range(4): a(f"v_cvt_f32_i32 v{42+i}, v{4+4*s+i}")
            a(ld(s,"s27"))
            a(f"v_pk_fma_f32 v[58:59], v[42:43], v[{28+4*s}:{29+4*s}], {'v[40:41]' if s==0 else 'v[58:59]'}")
            a(f"v_pk_fma_f32 v[58:59], v[44:45], v[{30+4*s}:{31+4*s}], v[58:59]")
        a("v_add_f32 v60, v58, v59")
        for s,r in ((3,8),(4,4),(5,2)):
            a(w)
            for i in range(4): a(f"v_cvt_f32_i32 v{46+4*(s-3)+i}, v{4+4*s+i}")
            a(ld(s,"s27"))
            a(f"v_add_f32_dpp v60, v60, v60 row_ror:{r} row_mask:0xf bank_mask:0xf")
        a("s_nop 1\nv_add_f32_dpp v60, v60, v60 row_ror:1 row_mask:0xf bank_mask:0xf")
        a(f"v_cmp_gt_f32 vcc, v60, v61\ns_cbranch_vccz {L(tag)}")
        a("v_mov_b32 v84, v60\nv_mov_b32 v85, v60\ns_nop 1\nv_permlane32_swap_b32 v84, v85\ns_nop 1\nv_max_f32 v84, v84, v85\nv_mov_b32 v85, v84\ns_nop 1")
        a("v_permlane16_swap_b32 v84, v85\ns_nop 1\nv_max3_f32 v84, v84, v85, v61\nv_sub_f32 v86, v61, v84\nv_exp_f32 v86, v86\nv_mov_b32 v61, v84")
        for i in range(6): a(f"v_pk_mul_f32 v[{68+2*i}:{69+2*i}], v[{68+2*i}:{69+2*i}], v[86:87] op_sel_hi:[1,0]")
        a("v_pk_mul_f32 v[62:63], v[62:63], v[86:87] op_sel_hi:[1,0]")
        a(f"{L(tag)}:")
        a("v_sub_f32 v66, v60, v61\nv_exp_f32 v66, v66\ns_nop 0")
        a(f"v_mul_f32_dpp v64, v80, v66 row_newbcast:{u} row_mask:0xf bank_mask:0xf\nv_add_f32 v62, v62, v66")
        a(f"v_fmac_f32_dpp v63, v81, v64 row_newbcast:{u} row_mask:0xf bank_mask:0xf")
        for i in range(6): a(f"v_pk_fma_f32 v[{68+2*i}:{69+2*i}], v[{46+2*i}:{47+2*i}], v[64:65], v[{68+2*i}:{69+2*i}] op_sel_hi:[1,0,1]")
        if u<U-1: a(f"s_cbranch_scc1 {L('tend')}")
    for u in range(U): it(u)
    a(f"{L('tend')}:")
    a(f"s_cmp_eq_u32 s59, 0\ns_cbranch_scc1 {L('fin')}")
    a("s_waitcnt vmcnt(6)\nv_mov_b32 v80, v82\nv_mov_b32 v81, v83")
    a("s_mov_b32 s26, s54\ns_mov_b32 s55, s59\ns_lshr_b32 s69, s58, 10")
    a(f"s_cmp_lt_u32 s61, {NST-2}\ns_cbranch_scc1 {L('stat')}")
    if dyn:
        a(f"v_mov_b32 v85, s63\ns_cmp_lg_u32 s3, 0\ns_cbranch_scc1 {L('xb')}")
        a(f"s_waitcnt lgkmcnt(0)\ns_add_u32 s64, s64, {D0}\ns_sub_i32 s4, {R}, s64\ns_max_i32 s4, s4, 0\ns_min_u32 s4, s4, s65\ns_lshl_b32 s4, s4, 16\ns_or_b32 s4, s4, s64")
        a("v_mov_b32 v84, s4\nds_write_b32 v85, v84\ns_waitcnt lgkmcnt(0)")
        a(f"{L('xb')}:\ns_barrier\nds_read_b32 v84, v85\ns_xor_b32 s63, s63, 8\ns_waitcnt lgkmcnt(0)\nv_readfirstlane_b32 s4, v84\ns_and_b32 s58, s4, 0xffff\ns_lshr_b32 s59, s4, 16")
    else:
        a("s_mov_b32 s59, 0")
    a(f"s_branch {L('nx')}")
    a(f"{L('stat')}:")
    a(f"s_add_u32 s58, s58, {TS}\ns_cmp_lg_u32 s3, 0\ns_cbranch_scc1 {L('nx')}")
    a(f"s_cmp_lg_u32 s61, 0\ns_cbranch_scc1 {L('chk')}")
    a(f"s_waitcnt lgkmcnt(0)\ns_and_b32 s64, s64, 0xffff\ns_cbranch_scc1 {L('nx')}")
    a("v_lshlrev_b32 v84, 2, v100\nv_mov_b32 v85, 0\nglobal_store_dword v84, v85, s[66:67] sc1\ns_waitcnt vmcnt(0)\ns_mov_b32 s64, 0x10000\ns_atomic_add s64, s[70:71], 0 glc\ns_waitcnt lgkmcnt(0)")
    a(f"s_branch {L('nx')}")
    a(f"{L('chk')}:\ns_cmp_lg_u32 s61, {NST-3}\ns_cbranch_scc1 {L('nx')}")
    a(f"{L('spin')}:\ns_waitcnt lgkmcnt(0)\ns_cmp_ge_u32 s64, 0x10000\ns_cbranch_scc1 {L('nx')}\ns_sleep 8\ns_mov_b32 s64, 0\ns_atomic_add s64, s[70:71], 0 glc\ns_branch {L('spin')}")
    a(f"{L('nx')}:")
    a(f"s_add_u32 s61, s61, 1\ns_cmp_eq_u32 s69, s62\ns_cbranch_scc1 {L('tile')}")
    a(f"s_xor_b32 s5, s69, s62\ns_mov_b32 s62, s69\ns_cmp_lt_u32 s5, 2\ns_cbranch_scc1 {L('coef')}")
    a(f"s_branch {L('flush')}")
    a(f"{L('fin')}:\ns_mov_b32 s72, 1")
    if ts==1: a("s_memrealtime s[92:93]")
    a(f"{L('flush')}:")
    for i in range(6): a(f"v_pk_add_f32 v[{68+2*i}:{69+2*i}], v[{68+2*i}:{69+2*i}], v[62:63] op_sel:[0,1] op_sel_hi:[1,1] neg_lo:[0,1] neg_hi:[0,1]")
    a("v_add_u32 v84, s31, v103\nv_add_u32 v85, s31, v102\nv_mov_b32 v86, s31")
    for j in range(3):
        b=68+4*j
        a(f"v_permlane32_swap_b32 v{b}, v{b+2}\nv_permlane32_swap_b32 v{b+1}, v{b+3}")
    a("s_nop 1")
    for j in range(3):
        b=68+4*j
        a(f"v_pk_add_f32 v[{b}:{b+1}], v[{b}:{b+1}], v[{b+2}:{b+3}]")
    a("s_nop 1")
    for j in range(3): a(f"v_permlane16_swap_b32 v{68+4*j}, v{69+4*j}")
    a("s_nop 1")
    for j in range(3): a(f"v_add_f32 v{88+j}, v{68+4*j}, v{69+4*j}")
    for j in range(3): a(f"ds_write_b32 v84, v{88+j} offset:{j*256}")
    a("ds_write_b32 v85, v62 offset:768\nds_write_b32 v86, v61 offset:784")
    if HPW>1:
        a(f"s_add_u32 s31, s31, {4*SLOT}")
        a(f"s_cmp_eq_u32 s72, 1\ns_cbranch_scc1 {L('tail')}")
        a("s_waitcnt lgkmcnt(0)")
        a("v_mov_b32 v61, 0xff800000\nv_mov_b32 v62, 0\nv_mov_b32 v63, 0")
        for i in range(12): a(f"v_mov_b32 v{68+i}, 0")
        a(f"s_branch {L('coef')}")
    a(f"{L('tail')}:")
    if ts==1: tsw()
    a("s_waitcnt vmcnt(0) lgkmcnt(0)\ns_barrier")
    if HPW<4: a(f"s_cmp_ge_u32 s3, {HPW}\ns_cbranch_scc1 {L('end')}")
    a(f"s_mul_i32 s4, s3, {4*SLOT}\ns_add_u32 s4, s4, {PART}\nv_mov_b32 v84, s4\nv_add_u32 v85, s4, v105")
    for w in range(4): a(f"ds_read_b32 v{4+w}, v84 offset:{w*SLOT+784}")
    for w in range(4): a(f"ds_read_b128 v[{8+4*w}:{11+4*w}], v84 offset:{w*SLOT+768}")
    for w in range(4): a(f"ds_read_b128 v[{24+4*w}:{27+4*w}], v85 offset:{w*SLOT}")
    a(f"s_mul_i32 s5, s24, {HPW}\ns_add_u32 s5, s5, s3\ns_mul_i32 s7, s5, {GW*1024}\ns_add_u32 s7, s7, {PB}\ns_add_u32 s52, s50, s7\ns_addc_u32 s53, s51, 0")
    a("s_lshl_b32 s7, s25, 10\nv_add_u32 v86, s7, v105\nv_cmp_eq_u32 vcc, 48, v100")
    a("s_waitcnt lgkmcnt(8)\nv_max_f32 v40, v4, v5\nv_max3_f32 v40, v40, v6, v7")
    for w in range(4): a(f"v_sub_f32 v{4+w}, v{4+w}, v40")
    for w in range(4): a(f"v_exp_f32 v{42+2*w}, v{4+w}")
    a("s_waitcnt lgkmcnt(4)")
    for w in range(4): a(f"v_pk_add_f32 v[{8+4*w}:{9+4*w}], v[{8+4*w}:{9+4*w}], v[{10+4*w}:{11+4*w}]")
    for w in range(4): a(f"v_add_f32 v{8+4*w}, v{8+4*w}, v{9+4*w}")
    a("v_mul_f32 v41, v42, v8\nv_fmac_f32 v41, v44, v12\nv_fmac_f32 v41, v46, v16\nv_fmac_f32 v41, v48, v20")
    a("s_waitcnt lgkmcnt(0)")
    t=52
    a(f"v_pk_mul_f32 v[{t}:{t+1}], v[24:25], v[42:43] op_sel_hi:[1,0]\nv_pk_mul_f32 v[{t+2}:{t+3}], v[26:27], v[42:43] op_sel_hi:[1,0]")
    for w in range(1,4):
        a(f"v_pk_fma_f32 v[{t}:{t+1}], v[{24+4*w}:{25+4*w}], v[{42+2*w}:{43+2*w}], v[{t}:{t+1}] op_sel_hi:[1,0,1]")
        a(f"v_pk_fma_f32 v[{t+2}:{t+3}], v[{26+4*w}:{27+4*w}], v[{42+2*w}:{43+2*w}], v[{t+2}:{t+3}] op_sel_hi:[1,0,1]")
    a(f"v_cndmask_b32 v{t}, v{t}, v40, vcc\nv_cndmask_b32 v{t+1}, v{t+1}, v41, vcc")
    a(f"s_mov_b32 exec_hi, 0x1ffff\nglobal_store_dwordx4 v86, v[{t}:{t+3}], s[52:53] {spol}")
    a("s_lshl_b32 s4, s3, 2\nv_mov_b32 v4, s4\nv_mov_b32 v5, 1\ns_mov_b64 exec, 1\ns_waitcnt vmcnt(0)")
    a("global_atomic_add v9, v4, v5, s[66:67] offset:128 sc0\ns_mov_b64 exec, -1")
    a("v_lshlrev_b32 v4, 10, v100\nv_mov_b32 v6, 0xff800000\nv_mov_b32 v7, 0\ns_waitcnt vmcnt(0)\nv_readfirstlane_b32 s4, v9")
    a(f"s_cmp_lg_u32 s4, {GW-1}\ns_cbranch_scc1 {L('end')}")
    B=GW
    a(f"s_mov_b64 exec, {hex((1<<GW)-1)}" if GW<32 else "s_mov_b32 exec_hi, 0")
    a("global_load_dwordx2 v[6:7], v4, s[52:53] offset:768 sc1")
    a("s_mov_b32 exec_lo, -1\ns_mov_b32 exec_hi, 0xffff")
    for i in range(B):
        a(f"global_load_dwordx4 v[{112+4*i}:{115+4*i}], v105, s[52:53] offset:{(i%4)*1024} sc1")
        if i%4==3 and i<B-1: a("s_add_u32 s52, s52, 4096\ns_addc_u32 s53, s53, 0")
    a("s_mov_b32 exec_hi, -1")
    a(f"s_waitcnt vmcnt({B})\nv_mov_b32 v8, v6\ns_nop 1")
    def allred(op):
        for rr in (8,4,2,1): a(f"{op}_dpp v8, v8, v8 row_ror:{rr} row_mask:0xf bank_mask:0xf\ns_nop 1")
        if GW>16: a(f"v_mov_b32 v9, v8\ns_nop 1\nv_permlane16_swap_b32 v8, v9\ns_nop 1\n{op} v8, v8, v9\ns_nop 0")
        a("v_readfirstlane_b32 s6, v8")
    allred("v_max_f32")
    a("s_nop 1\nv_subrev_f32 v6, s6, v6\nv_exp_f32 v6, v6\ns_nop 0\nv_mul_f32 v8, v6, v7\ns_nop 1")
    allred("v_add_f32")
    a("s_nop 1\nv_rcp_f32 v10, s6\nv_mov_b32 v12, 0\nv_mov_b32 v13, 0\nv_mov_b32 v14, 0\nv_mov_b32 v15, 0")
    for i in range(B): a(f"v_readlane_b32 s{56+i}, v6, {i}")
    a("s_mov_b32 exec_hi, 0xffff")
    for i in range(B):
        if i%4==0: a(f"s_waitcnt vmcnt({B-4-i})")
        sp=f"s[{56+(i&~1)}:{57+(i&~1)}]"; os_="op_sel:[0,1,0] op_sel_hi:[1,1,1]" if i&1 else "op_sel_hi:[1,0,1]"
        a(f"v_pk_fma_f32 v[12:13], v[{112+4*i}:{113+4*i}], {sp}, v[12:13] {os_}")
        a(f"v_pk_fma_f32 v[14:15], v[{114+4*i}:{115+4*i}], {sp}, v[14:15] {os_}")
    a("v_pk_mul_f32 v[12:13], v[12:13], v[10:11] op_sel_hi:[1,0]\nv_pk_mul_f32 v[14:15], v[14:15], v[10:11] op_sel_hi:[1,0]")
    a("v_cvt_pk_bf16_f32 v16, v12, v13\nv_cvt_pk_bf16_f32 v17, v14, v15")
    a("s_mul_i32 s7, s5, 384\nv_add_u32 v20, s7, v104\nglobal_store_dwordx2 v20, v[16:17], s[46:47]\ns_mov_b32 exec_hi, -1")
    a(f"{L('end')}:")
    if ts==2:
        a("s_waitcnt vmcnt(0)\ns_memrealtime s[92:93]"); tsw()
    a(f"{L('exit')}:")
    body="\n".join(o)
    src=f""".text
.globl {kn}
.p2align 8
.type {kn},@function
{kn}:
{body}
s_endpgm
.section .rodata,"a"
.p2align 6
.amdhsa_kernel {kn}
  .amdhsa_next_free_vgpr {nv}
  .amdhsa_next_free_sgpr 102
  .amdhsa_accum_offset {nv}
  .amdhsa_group_segment_fixed_size 0
  .amdhsa_kernarg_size 80
  .amdhsa_user_sgpr_count 2
  .amdhsa_user_sgpr_kernarg_segment_ptr 1
  .amdhsa_system_sgpr_workgroup_id_x 1
.end_amdhsa_kernel
"""
    return src, G, 256, LDS
def single(path, **kw):
    src,G,Bk,LDS=gen(**kw)
    open(path,'w').write(HDRC+f"; @launch grid=({G},1,1) block=({Bk},1,1) lds={LDS}\n.amdgcn_target \"amdgcn-amd-amdhsa--gfx950\"\n"+src)
def multi(tag, items):
    from build import build
    hdr=""; body=""; spec=[]
    for name,kw in items:
        chk=kw.pop('chk',2 if kw.get('ts') else 1)
        src,G,Bk,LDS=gen(kn=name+"_kernel", **kw)
        hdr+=f"; @launch kernel={name}_kernel grid=({G},1,1) block=({Bk},1,1) lds={LDS}\n"; body+=src
        spec.append(f"{name} {tag}.co {chk} 1 {name}_kernel {G} {Bk} {LDS}")
    open(tag+".s",'w').write(hdr+".amdgcn_target \"amdgcn-amd-amdhsa--gfx950\"\n"+body)
    build(tag+".s")
    open(tag+".txt",'w').write("\n".join(spec)+"\n")
if __name__=="__main__":
    exec(open(sys.argv[1]).read())
```

```python
import math, sys, struct
KN="standalone__kv_cache_quant_int4_int2_kv_with_per_channel_or_per_token_scales__decode"
def f2u(x): return struct.unpack('<I', struct.pack('<f', x))[0]
HDRC = """; Kernarg layout for this problem (80 bytes, ptrs only, base s[0:1]):
"""
def gen(kn=KN+"_kernel", GW=32, U=16, m=4, mode='A', pat=2, ts=False, ldsmin=0, pol="nt", spol="sc1", sclpol="nt", lin=False, nosc=False):
    G=256; NR=G//GW; HPW=GW//8; assert HPW>=1
    TT=16*m; step=16 if mode=='A' else 4; wstep=4 if mode=='A' else 4*m
    assert U%m==0
    NB=256//U; BPS=1024//(GW*U); assert BPS>=1 and BPS*GW*U==1024
    NS=2*HPW; SPW=max(1,NS//4)
    SLOT=800; PART=NS*1536; FLAG=PART+HPW*4*SLOT+256; LDS=max(FLAG+16, ldsmin)
    PB=4<<20
    def tokoff(u): return (u//m)*GW*TT+(u%m)*step
    BT=tokoff(U)
    F=f2u(192**-0.5*math.log2(math.e))
    o=[]; a=o.append
    L=lambda s: f"L_{s}_{kn}"
    def tsw():
        a("s_getreg_b32 s4, hwreg(HW_REG_XCC_ID)\ns_lshl_b32 s5, s2, 2\ns_add_u32 s5, s5, s3\ns_lshl_b32 s5, s5, 4\ns_waitcnt lgkmcnt(0)")
        a("v_mov_b32 v4, s90\nv_mov_b32 v5, s92\nv_mov_b32 v6, s4\nv_mov_b32 v7, s2\nv_mov_b32 v8, s5")
        a("s_mov_b64 exec, 1\nglobal_store_dwordx4 v8, v[4:7], s[50:51]\ns_mov_b64 exec, -1")
    a(f"s_cmp_ge_u32 s2, {G}\ns_cbranch_scc1 {L('exit')}")
    a("s_load_dwordx16 s[32:47], s[0:1], 0\ns_load_dwordx4 s[48:51], s[0:1], 64")
    if ts: a("s_memrealtime s[90:91]")
    a("v_lshrrev_b32 v1, 6, v0\nv_and_b32 v3, 15, v0\nv_readfirstlane_b32 s3, v1")
    a("v_bfe_u32 v5, v0, 4, 2\nv_and_b32 v100, 63, v0")
    a("v_mul_u32_u24 v1, 0x300, v5\nv_lshlrev_b32 v101, 4, v3\nv_add_u32 v1, v1, v101")
    if lin: a("v_lshlrev_b32 v1, 4, v100")
    lm=int(math.log2(m))
    a(f"v_and_b32 v6, {U-1}, v3\nv_lshrrev_b32 v7, {lm}, v6\nv_and_b32 v6, {m-1}, v6")
    a(f"v_mul_u32_u24 v7, {GW*TT}, v7\nv_mul_u32_u24 v6, {step}, v6\nv_add3_u32 v2, v7, v6, v5\nv_lshlrev_b32 v2, 1, v2")
    a("v_lshlrev_b32 v102, 2, v5\nv_add_u32 v103, v101, v102")
    a("v_lshlrev_b32 v104, 3, v100\nv_lshlrev_b32 v105, 4, v100")
    if pat==2: a(f"s_lshr_b32 s24, s2, {int(math.log2(GW))}\ns_and_b32 s25, s2, {GW-1}")
    else: a(f"s_and_b32 s24, s2, {NR-1}\ns_lshr_b32 s25, s2, {int(math.log2(NR))}")
    a(f"s_mul_i32 s26, s24, {HPW*32768}\ns_mul_i32 s27, s25, {TT}\ns_add_u32 s26, s26, s27\ns_mul_i32 s27, s3, {wstep}\ns_add_u32 s26, s26, s27")
    a("s_lshl_b32 s28, s26, 1\ns_mul_i32 s26, s26, 768")
    if NS>=4: a(f"s_mul_i32 s30, s3, {SPW}")
    else: a(f"s_and_b32 s30, s3, {NS-1}")
    a(f"s_mul_i32 s4, s24, {NS}\ns_add_u32 s4, s4, s30\ns_lshr_b32 s5, s4, 1\ns_mul_i32 s4, s4, 384\ns_mul_i32 s5, s5, 384")
    a("v_add_u32 v6, s4, v104\nv_add_u32 v7, s5, v104")
    a("v_mov_b32 v82, 0\nv_mov_b32 v83, 0\nv_mov_b32 v80, 0\nv_mov_b32 v81, 0\nv_mov_b32 v41, 0")
    a("s_waitcnt lgkmcnt(0)")
    a("s_mov_b32 exec_hi, 0xffff")
    nq=(SPW+1)//2
    for i in range(nq): a(f"global_load_dwordx2 v[{110+2*i}:{111+2*i}], v7, s[32:33] offset:{i*384}")
    for i in range(SPW):
        a(f"global_load_dwordx2 v[{120+2*i}:{121+2*i}], v6, s[38:39] offset:{i*384}")
        a(f"global_load_dwordx2 v[{130+2*i}:{131+2*i}], v6, s[40:41] offset:{i*384}")
    a("s_mov_b32 exec_hi, -1")
    for d,s,n in ((8,34,805306368),(12,36,805306368),(16,42,2097152),(20,44,2097152)):
        a(f"s_mov_b32 s{d}, s{s}\ns_and_b32 s{d+1}, s{s+1}, 0xffff\ns_mov_b32 s{d+2}, {n}\ns_mov_b32 s{d+3}, 0x20000")
    a(f"buffer_load_short_d16_hi v80, v2, s[16:19], s28 offen {sclpol}\nbuffer_load_short_d16_hi v81, v2, s[20:23], s28 offen {sclpol}")
    def ld(slot, soff):
        srd="s[8:11]" if slot<3 else "s[12:15]"
        off=(slot%3)*(1024 if lin else 256)
        return f"buffer_load_dwordx4 v[{4+4*slot}:{7+4*slot}], v1, {srd}, {soff} offen offset:{off} {pol}"
    for s in range(6): a(ld(s,"s26"))
    a("v_mov_b32 v61, 0xff800000\nv_mov_b32 v62, 0\nv_mov_b32 v63, 0")
    for i in range(12): a(f"v_mov_b32 v{68+i}, 0")
    a(f"s_mov_b32 s6, 0x{F:08x}\ns_mul_i32 s4, s30, 1536\nv_add_u32 v106, s4, v105")
    a("s_waitcnt vmcnt(8)")
    a("s_mov_b32 exec_hi, 0xffff")
    def unp(d,s): return f"v_lshlrev_b32 v{d}, 16, v{s}\nv_and_b32 v{d+1}, 0xffff0000, v{s}\nv_lshlrev_b32 v{d+2}, 16, v{s+1}\nv_and_b32 v{d+3}, 0xffff0000, v{s+1}"
    for i in range(SPW):
        a(unp(140,110+2*(i//2))); a(unp(144,120+2*i)); a(unp(148,130+2*i))
        c=152+8*i
        for j in range(4): a(f"v_mul_f32 v{144+j}, v{140+j}, v{144+j}")
        for j in range(4): a(f"v_mul_f32 v{c+j}, s6, v{144+j}")
        for j in range(4): a(f"v_mul_f32_e64 v{c+4+j}, -v{c+j}, v{148+j}")
        a(f"ds_write_b128 v106, v[{c}:{c+3}] offset:{i*1536}\nds_write_b128 v106, v[{c+4}:{c+7}] offset:{i*1536+768}")
    a("s_mov_b32 exec_hi, -1")
    a("s_waitcnt lgkmcnt(0)\ns_barrier")
    a(f"s_mov_b32 s29, 0\ns_mov_b32 s30, 0\ns_mul_i32 s31, s3, {SLOT}\ns_add_u32 s31, s31, {PART}")
    a(f"{L('coef')}:")
    a("v_add_u32 v84, s30, v101")
    for j in range(3): a(f"ds_read_b128 v[{28+4*j}:{31+4*j}], v84 offset:{j*256}")
    for j in range(3): a(f"ds_read_b128 v[{88+4*j}:{91+4*j}], v84 offset:{768+j*256}")
    a("s_add_u32 s30, s30, 1536\ns_waitcnt lgkmcnt(0)")
    a("v_pk_add_f32 v[88:89], v[88:89], v[90:91]\nv_pk_add_f32 v[92:93], v[92:93], v[94:95]\nv_pk_add_f32 v[96:97], v[96:97], v[98:99]")
    a("v_pk_add_f32 v[88:89], v[88:89], v[92:93]\nv_pk_add_f32 v[88:89], v[88:89], v[96:97]\nv_add_f32 v40, v88, v89")
    a(f"{L('blk')}:")
    a(f"s_add_u32 s4, s28, {BT*2}\ns_cmp_lt_u32 s29, {NB-1}\ns_cselect_b32 s28, s4, s28")
    if not nosc: a(f"buffer_load_short_d16_hi v82, v2, s[16:19], s28 offen {sclpol}\nbuffer_load_short_d16_hi v83, v2, s[20:23], s28 offen {sclpol}")
    def it(u, loads, tag):
        base = 7 if (u==0 and not nosc) else 5
        def w(s): return f"s_waitcnt vmcnt({base if loads else (5-s)})"
        if loads: a(f"s_add_u32 s27, s26, {tokoff(u+1)*768}")
        for s in range(3):
            a(w(s))
            for i in range(4): a(f"v_cvt_f32_i32 v{42+i}, v{4+4*s+i}")
            if loads: a(ld(s,"s27"))
            a(f"v_pk_fma_f32 v[58:59], v[42:43], v[{28+4*s}:{29+4*s}], {'v[40:41]' if s==0 else 'v[58:59]'}")
            a(f"v_pk_fma_f32 v[58:59], v[44:45], v[{30+4*s}:{31+4*s}], v[58:59]")
        a("v_add_f32 v60, v58, v59")
        for s,r in ((3,8),(4,4),(5,2)):
            a(w(s))
            for i in range(4): a(f"v_cvt_f32_i32 v{46+4*(s-3)+i}, v{4+4*s+i}")
            if loads: a(ld(s,"s27"))
            a(f"v_add_f32_dpp v60, v60, v60 row_ror:{r} row_mask:0xf bank_mask:0xf")
        a("s_nop 1\nv_add_f32_dpp v60, v60, v60 row_ror:1 row_mask:0xf bank_mask:0xf")
        a(f"v_cmp_gt_f32 vcc, v60, v61\ns_cbranch_vccz {L(tag)}")
        a("v_mov_b32 v84, v60\nv_mov_b32 v85, v60\ns_nop 1\nv_permlane32_swap_b32 v84, v85\ns_nop 1\nv_max_f32 v84, v84, v85\nv_mov_b32 v85, v84\ns_nop 1")
        a("v_permlane16_swap_b32 v84, v85\ns_nop 1\nv_max3_f32 v84, v84, v85, v61\nv_sub_f32 v86, v61, v84\nv_exp_f32 v86, v86\nv_mov_b32 v61, v84")
        for i in range(6): a(f"v_pk_mul_f32 v[{68+2*i}:{69+2*i}], v[{68+2*i}:{69+2*i}], v[86:87] op_sel_hi:[1,0]")
        a("v_pk_mul_f32 v[62:63], v[62:63], v[86:87] op_sel_hi:[1,0]")
        a(f"{L(tag)}:")
        a("v_sub_f32 v66, v60, v61\nv_exp_f32 v66, v66\ns_nop 0")
        a(f"v_mul_f32_dpp v64, v80, v66 row_newbcast:{u} row_mask:0xf bank_mask:0xf\nv_add_f32 v62, v62, v66")
        a(f"v_fmac_f32_dpp v63, v81, v64 row_newbcast:{u} row_mask:0xf bank_mask:0xf")
        for i in range(6): a(f"v_pk_fma_f32 v[{68+2*i}:{69+2*i}], v[{46+2*i}:{47+2*i}], v[64:65], v[{68+2*i}:{69+2*i}] op_sel_hi:[1,0,1]")
    for u in range(U-1): it(u, True, f"s{u}")
    a(f"s_cmp_eq_u32 s29, {NB-1}\ns_cbranch_scc1 {L('last')}")
    it(U-1, True, "sl")
    a(f"s_add_u32 s26, s26, {BT*768}\nv_mov_b32 v80, v82\nv_mov_b32 v81, v83\ns_add_u32 s29, s29, 1")
    a(f"s_and_b32 s4, s29, {BPS-1}\ns_cbranch_scc1 {L('blk')}") if BPS>1 else None
    a(f"s_and_b32 s4, s29, {2*BPS-1}\ns_cbranch_scc1 {L('coef')}")
    a(f"s_branch {L('flush')}")
    a(f"{L('last')}:")
    it(U-1, False, "sz")
    a("s_add_u32 s29, s29, 1")
    if ts==1: a("s_memrealtime s[92:93]")
    a(f"{L('flush')}:")
    for i in range(6): a(f"v_pk_add_f32 v[{68+2*i}:{69+2*i}], v[{68+2*i}:{69+2*i}], v[62:63] op_sel:[0,1] op_sel_hi:[1,1] neg_lo:[0,1] neg_hi:[0,1]")
    a("v_add_u32 v84, s31, v103\nv_add_u32 v85, s31, v102\nv_mov_b32 v86, s31")
    for j in range(3):
        b=68+4*j
        a(f"v_permlane32_swap_b32 v{b}, v{b+2}\nv_permlane32_swap_b32 v{b+1}, v{b+3}")
    a("s_nop 1")
    for j in range(3):
        b=68+4*j
        a(f"v_pk_add_f32 v[{b}:{b+1}], v[{b}:{b+1}], v[{b+2}:{b+3}]")
    a("s_nop 1")
    for j in range(3): a(f"v_permlane16_swap_b32 v{68+4*j}, v{69+4*j}")
    a("s_nop 1")
    for j in range(3): a(f"v_add_f32 v{88+j}, v{68+4*j}, v{69+4*j}")
    for j in range(3): a(f"ds_write_b32 v84, v{88+j} offset:{j*256}")
    a("ds_write_b32 v85, v62 offset:768\nds_write_b32 v86, v61 offset:784")
    a(f"s_add_u32 s31, s31, {4*SLOT}")
    a(f"s_cmp_eq_u32 s29, {NB}\ns_cbranch_scc1 {L('tail')}")
    a("s_waitcnt lgkmcnt(0)")
    a("v_mov_b32 v61, 0xff800000\nv_mov_b32 v62, 0\nv_mov_b32 v63, 0")
    for i in range(12): a(f"v_mov_b32 v{68+i}, 0")
    a(f"s_branch {L('coef')}")
    a(f"{L('tail')}:")
    if ts==1: tsw()
    a("s_waitcnt lgkmcnt(0)\ns_barrier")
    if HPW<4: a(f"s_cmp_ge_u32 s3, {HPW}\ns_cbranch_scc1 {L('sig')}")
    a(f"s_mul_i32 s4, s3, {4*SLOT}\ns_add_u32 s4, s4, {PART}\nv_mov_b32 v84, s4\nv_add_u32 v85, s4, v105")
    a(f"s_mul_i32 s5, s24, {HPW}\ns_add_u32 s5, s5, s3\ns_mul_i32 s7, s5, {GW}\ns_add_u32 s7, s7, s25\ns_lshl_b32 s7, s7, 10\ns_add_u32 s7, s7, {PB}\nv_add_u32 v86, s7, v105")
    a("v_cmp_eq_u32 vcc, 48, v100")
    for r in range(max(1,HPW//4)):
        ob=r*16*SLOT
        for w in range(4): a(f"ds_read_b32 v{4+w}, v84 offset:{ob+w*SLOT+784}")
        for w in range(4): a(f"ds_read_b128 v[{8+4*w}:{11+4*w}], v84 offset:{ob+w*SLOT+768}")
        for w in range(4): a(f"ds_read_b128 v[{24+4*w}:{27+4*w}], v85 offset:{ob+w*SLOT}")
        a("s_waitcnt lgkmcnt(8)\nv_max_f32 v40, v4, v5\nv_max3_f32 v40, v40, v6, v7")
        for w in range(4): a(f"v_sub_f32 v{4+w}, v{4+w}, v40")
        for w in range(4): a(f"v_exp_f32 v{42+2*w}, v{4+w}")
        a("s_waitcnt lgkmcnt(4)")
        for w in range(4): a(f"v_pk_add_f32 v[{8+4*w}:{9+4*w}], v[{8+4*w}:{9+4*w}], v[{10+4*w}:{11+4*w}]")
        for w in range(4): a(f"v_add_f32 v{8+4*w}, v{8+4*w}, v{9+4*w}")
        a("v_mul_f32 v41, v42, v8\nv_fmac_f32 v41, v44, v12\nv_fmac_f32 v41, v46, v16\nv_fmac_f32 v41, v48, v20")
        a("s_waitcnt lgkmcnt(0)")
        t=52+4*r
        a(f"v_pk_mul_f32 v[{t}:{t+1}], v[24:25], v[42:43] op_sel_hi:[1,0]\nv_pk_mul_f32 v[{t+2}:{t+3}], v[26:27], v[42:43] op_sel_hi:[1,0]")
        for w in range(1,4):
            a(f"v_pk_fma_f32 v[{t}:{t+1}], v[{24+4*w}:{25+4*w}], v[{42+2*w}:{43+2*w}], v[{t}:{t+1}] op_sel_hi:[1,0,1]")
            a(f"v_pk_fma_f32 v[{t+2}:{t+3}], v[{26+4*w}:{27+4*w}], v[{42+2*w}:{43+2*w}], v[{t+2}:{t+3}] op_sel_hi:[1,0,1]")
        a(f"v_cndmask_b32 v{t}, v{t}, v40, vcc\nv_cndmask_b32 v{t+1}, v{t+1}, v41, vcc")
        a(f"s_mov_b32 exec_hi, 0x1ffff\nglobal_store_dwordx4 v86, v[{t}:{t+3}], s[50:51] {spol}\ns_mov_b32 exec_hi, -1")
        if r+1<HPW//4: a(f"v_add_u32 v86, {4*GW*1024}, v86")
    a(f"{L('sig')}:")
    a("s_waitcnt vmcnt(0)\ns_barrier")
    a(f"v_mov_b32 v87, {FLAG}")
    a(f"s_cmp_lg_u32 s3, 0\ns_cbranch_scc1 {L('wait')}")
    a(f"s_lshl_b32 s4, s24, 2\nv_mov_b32 v4, s4\nv_mov_b32 v5, 1\ns_mov_b64 exec, 1")
    a("global_atomic_add v6, v4, v5, s[48:49] sc0\ns_waitcnt vmcnt(0)\nds_write_b32 v87, v6\ns_waitcnt lgkmcnt(0)\ns_mov_b64 exec, -1")
    a(f"{L('wait')}:")
    a("s_barrier\nds_read_b32 v6, v87\ns_waitcnt lgkmcnt(0)\nv_readfirstlane_b32 s4, v6")
    a(f"s_cmp_lg_u32 s4, {GW-1}\ns_cbranch_scc1 {L('end')}")
    if HPW<4: a(f"s_cmp_ge_u32 s3, {HPW}\ns_cbranch_scc1 {L('end')}")
    B=min(GW,32)
    a(f"s_mul_i32 s5, s24, {HPW}\ns_add_u32 s5, s5, s3")
    for r in range(max(1,HPW//4)):
        a(f"s_mul_i32 s7, s5, {GW*1024}\ns_add_u32 s7, s7, {PB}\ns_add_u32 s52, s50, s7\ns_addc_u32 s53, s51, 0")
        a(f"v_lshlrev_b32 v4, 10, v100\nv_mov_b32 v6, 0xff800000\nv_mov_b32 v7, 0")
        if GW<64: a(f"s_mov_b64 exec, {hex((1<<GW)-1)}" if GW<32 else "s_mov_b32 exec_hi, 0")
        a("global_load_dwordx2 v[6:7], v4, s[52:53] offset:768 sc1")
        a("s_mov_b32 exec_lo, -1\ns_mov_b32 exec_hi, 0xffff")
        for bt in range(GW//B):
            for i in range(B):
                a(f"global_load_dwordx4 v[{112+4*i}:{115+4*i}], v105, s[52:53] offset:{(i%4)*1024} sc1")
                if i%4==3: a("s_add_u32 s52, s52, 4096\ns_addc_u32 s53, s53, 0")
            if bt==0:
                a("s_mov_b32 exec_hi, -1")
                a(f"s_waitcnt vmcnt({B})\nv_mov_b32 v8, v6\ns_nop 1")
                for rr in (8,4,2,1): a(f"v_max_f32_dpp v8, v8, v8 row_ror:{rr} row_mask:0xf bank_mask:0xf\ns_nop 1")
                a("v_mov_b32 v9, v8\ns_nop 1\nv_permlane32_swap_b32 v8, v9\ns_nop 1\nv_max_f32 v8, v8, v9\nv_mov_b32 v9, v8\ns_nop 1\nv_permlane16_swap_b32 v8, v9\ns_nop 1\nv_max_f32 v8, v8, v9")
                a("v_sub_f32 v6, v6, v8\nv_exp_f32 v6, v6\ns_nop 0\nv_mul_f32 v8, v6, v7\ns_nop 1")
                for rr in (8,4,2,1): a(f"v_add_f32_dpp v8, v8, v8 row_ror:{rr} row_mask:0xf bank_mask:0xf\ns_nop 1")
                a("v_mov_b32 v9, v8\ns_nop 1\nv_permlane32_swap_b32 v8, v9\ns_nop 1\nv_add_f32 v8, v8, v9\nv_mov_b32 v9, v8\ns_nop 1\nv_permlane16_swap_b32 v8, v9\ns_nop 1\nv_add_f32 v8, v8, v9")
                a("v_rcp_f32 v10, v8\nv_mov_b32 v12, 0\nv_mov_b32 v13, 0\nv_mov_b32 v14, 0\nv_mov_b32 v15, 0")
            for i in range(B): a(f"v_readlane_b32 s{56+i}, v6, {bt*B+i}")
            a("s_mov_b32 exec_hi, 0xffff")
            for i in range(B):
                if i%4==0: a(f"s_waitcnt vmcnt({B-4-i})")
                sp=f"s[{56+(i&~1)}:{57+(i&~1)}]"; os_="op_sel:[0,1,0] op_sel_hi:[1,1,1]" if i&1 else "op_sel_hi:[1,0,1]"
                a(f"v_pk_fma_f32 v[12:13], v[{112+4*i}:{113+4*i}], {sp}, v[12:13] {os_}")
                a(f"v_pk_fma_f32 v[14:15], v[{114+4*i}:{115+4*i}], {sp}, v[14:15] {os_}")
        a("v_pk_mul_f32 v[12:13], v[12:13], v[10:11] op_sel_hi:[1,0]\nv_pk_mul_f32 v[14:15], v[14:15], v[10:11] op_sel_hi:[1,0]")
        a(f"v_cvt_pk_bf16_f32 v{16+2*r}, v12, v13\nv_cvt_pk_bf16_f32 v{17+2*r}, v14, v15")
        a(f"s_mul_i32 s7, s5, 384\nv_add_u32 v{20+r}, s7, v104\nglobal_store_dwordx2 v{20+r}, v[{16+2*r}:{17+2*r}], s[46:47]")
        a("s_mov_b32 exec_hi, -1\ns_add_u32 s5, s5, 4")
    a(f"{L('end')}:")
    if ts==2:
        a("s_waitcnt vmcnt(0)\ns_memrealtime s[92:93]"); tsw()
    a(f"{L('exit')}:")
    body="\n".join(o)
    src=f""".text
.globl {kn}
.p2align 8
.type {kn},@function
{kn}:
{body}
s_endpgm
.section .rodata,"a"
.p2align 6
.amdhsa_kernel {kn}
  .amdhsa_next_free_vgpr 256
  .amdhsa_next_free_sgpr 102
  .amdhsa_accum_offset 256
  .amdhsa_group_segment_fixed_size 0
  .amdhsa_kernarg_size 80
  .amdhsa_user_sgpr_count 2
  .amdhsa_user_sgpr_kernarg_segment_ptr 1
  .amdhsa_system_sgpr_workgroup_id_x 1
.end_amdhsa_kernel
"""
    return src, G, 256, LDS
def single(path, **kw):
    src,G,Bk,LDS=gen(**kw)
    open(path,'w').write(HDRC+f"; @launch grid=({G},1,1) block=({Bk},1,1) lds={LDS}\n.amdgcn_target \"amdgcn-amd-amdhsa--gfx950\"\n"+src)
def multi(tag, items):
    from build import build
    hdr=""; body=""; spec=[]
    for name,kw in items:
        chk=kw.pop('chk',2 if kw.get('ts') else 1)
        src,G,Bk,LDS=gen(kn=name+"_kernel", **kw)
        hdr+=f"; @launch kernel={name}_kernel grid=({G},1,1) block=({Bk},1,1) lds={LDS}\n"; body+=src
        spec.append(f"{name} {tag}.co {chk} 1 {name}_kernel {G} {Bk} {LDS}")
    open(tag+".s",'w').write(hdr+".amdgcn_target \"amdgcn-amd-amdhsa--gfx950\"\n"+body)
    build(tag+".s")
    open(tag+".txt",'w').write("\n".join(spec)+"\n")
if __name__=="__main__":
    exec(open(sys.argv[1]).read())
```

```python
import gen_kern, gen2
gen_kern.single("../cand/g32.s", GW=32)
gen_kern.single("../cand/g16.s", GW=16)
gen_kern.single("../cand/g8.s", GW=8)
gen2.single("../cand/d8.s", GW=8)
gen2.single("../cand/d8m8.s", GW=8, ms=8)
gen2.single("../cand/d16.s", GW=16, dynu=640)
```

```python
import gen_kern, gen2
gen_kern.single("../cand/g32no.s", GW=32, pol="")
gen_kern.single("../cand/g32sc01nt.s", GW=32, pol="sc0 sc1 nt")
gen_kern.single("../cand/g64.s", GW=64)
gen_kern.single("../cand/g32scl.s", GW=32, sclpol="")
```

```python
import math, sys, struct
from gen_kern import KN, HDRC, f2u
def gen(kn=KN+"_kernel", GW=8, ms=4, U=8, dynu=320, SH=None, minn=1, maxn=8, pat=2, ts=0, ldsmin=0, pol="nt", spol="sc1", dyn=True, G=256, nv=256, nosc=False, noat=False, il=False):
    NR=G//GW; HPW=GW*32//G; assert 1<=HPW<=4 and GW<=32
    R=HPW*2048; TS=GW*ms
    assert 1024%TS==0 and ms<=U and maxn<=U
    if not dyn: dynu=0
    NST=(R-dynu)//TS; D0=NST*TS; assert R-D0<=1024 and NST>=4
    if SH is None: SH=int(math.log2(GW))+2
    NS=2*HPW; SPW=max(1,NS//4)
    SLOT=800; PART=NS*1536; XCH=PART+HPW*4*SLOT+256; LDS=max(XCH+16, ldsmin)
    PB=4<<20; CB=8<<20
    NREC=805306368
    F=f2u(192**-0.5*math.log2(math.e))
    o=[]; a=o.append
    L=lambda s: f"L_{s}_{kn}"
    def tsw():
        a("s_getreg_b32 s4, hwreg(HW_REG_XCC_ID)\ns_lshl_b32 s5, s2, 2\ns_add_u32 s5, s5, s3\ns_lshl_b32 s5, s5, 4\ns_waitcnt lgkmcnt(0)")
        a("v_mov_b32 v4, s90\nv_mov_b32 v5, s92\nv_mov_b32 v6, s4\nv_mov_b32 v7, s2\nv_mov_b32 v8, s5")
        a("s_mov_b64 exec, 1\nglobal_store_dwordx4 v8, v[4:7], s[50:51]\ns_mov_b64 exec, -1")
    a(f"s_cmp_ge_u32 s2, {G}\ns_cbranch_scc1 {L('exit')}")
    a("s_load_dwordx16 s[32:47], s[0:1], 0\ns_load_dwordx4 s[48:51], s[0:1], 64")
    if ts: a("s_memrealtime s[90:91]")
    a("v_lshrrev_b32 v1, 6, v0\nv_and_b32 v3, 15, v0\nv_readfirstlane_b32 s3, v1")
    a("v_bfe_u32 v5, v0, 4, 2\nv_and_b32 v100, 63, v0")
    a("v_mul_u32_u24 v1, 0x300, v5\nv_lshlrev_b32 v101, 4, v3\nv_add_u32 v1, v1, v101")
    a("v_lshlrev_b32 v2, 1, v5")
    a("v_lshlrev_b32 v102, 2, v5\nv_add_u32 v103, v101, v102")
    a("v_lshlrev_b32 v104, 3, v100\nv_lshlrev_b32 v105, 4, v100")
    if pat==2: a(f"s_lshr_b32 s24, s2, {int(math.log2(GW))}\ns_and_b32 s25, s2, {GW-1}")
    else: a(f"s_and_b32 s24, s2, {NR-1}\ns_lshr_b32 s25, s2, {int(math.log2(NR))}")
    a(f"s_mul_i32 s60, s24, {32768 if il else HPW*32768}\ns_lshl_b32 s4, s3, 2\ns_add_u32 s60, s60, s4")
    a(f"s_mul_i32 s58, s25, {ms}\ns_lshl_b32 s4, s58, 4\ns_add_u32 s4, s4, s60\ns_mul_i32 s26, s4, 768\ns_lshl_b32 s4, s4, 1")
    a(f"v_min_u32 v107, {ms-1}, v3\nv_lshl_add_u32 v107, v107, 5, v2\nv_add_u32 v107, s4, v107")
    a(f"s_add_u32 s58, s58, {TS}\ns_mov_b32 s59, {ms}\ns_mov_b32 s55, {ms}\ns_mov_b32 s57, {NREC}\ns_mov_b32 s61, 0\ns_mov_b32 s62, 0\ns_mov_b32 s63, {XCH}\ns_mov_b32 s72, 0")
    if NS>=4: a(f"s_mul_i32 s30, s3, {SPW}")
    else: a(f"s_and_b32 s30, s3, {NS-1}")
    if il: a(f"s_lshr_b32 s5, s30, 1\ns_mul_i32 s5, s5, {NR}\ns_add_u32 s5, s5, s24\ns_and_b32 s4, s30, 1\ns_lshl_b32 s6, s5, 1\ns_add_u32 s4, s4, s6\ns_mul_i32 s4, s4, 384\ns_mul_i32 s5, s5, 384")
    else: a(f"s_mul_i32 s4, s24, {NS}\ns_add_u32 s4, s4, s30\ns_lshr_b32 s5, s4, 1\ns_mul_i32 s4, s4, 384\ns_mul_i32 s5, s5, 384")
    a("v_add_u32 v6, s4, v104\nv_add_u32 v7, s5, v104")
    a("v_mov_b32 v82, 0\nv_mov_b32 v83, 0\nv_mov_b32 v80, 0\nv_mov_b32 v81, 0\nv_mov_b32 v41, 0")
    a("s_waitcnt lgkmcnt(0)")
    a("s_mov_b32 exec_hi, 0xffff")
    nq=(SPW+1)//2
    for i in range(nq): a(f"global_load_dwordx2 v[{110+2*i}:{111+2*i}], v7, s[32:33] offset:{i*384}")
    for i in range(SPW):
        a(f"global_load_dwordx2 v[{120+2*i}:{121+2*i}], v6, s[38:39] offset:{i*384}")
        a(f"global_load_dwordx2 v[{130+2*i}:{131+2*i}], v6, s[40:41] offset:{i*384}")
    a("s_mov_b32 exec_hi, -1")
    for d,s,n in ((8,34,NREC),(12,36,NREC),(16,42,2097152),(20,44,2097152)):
        a(f"s_mov_b32 s{d}, s{s}\ns_and_b32 s{d+1}, s{s+1}, 0xffff\ns_mov_b32 s{d+2}, {n}\ns_mov_b32 s{d+3}, 0x20000")
    a(f"buffer_load_short_d16_hi v80, v107, s[16:19], 0 offen nt\nbuffer_load_short_d16_hi v81, v107, s[20:23], 0 offen nt")
    def ld(slot, soff):
        srd="s[8:11]" if slot<3 else "s[12:15]"
        return f"buffer_load_dwordx4 v[{4+4*slot}:{7+4*slot}], v1, {srd}, {soff} offen offset:{(slot%3)*256} {pol}"
    for s in range(6): a(ld(s,"s26"))
    a("v_mov_b32 v61, 0xff800000\nv_mov_b32 v62, 0\nv_mov_b32 v63, 0")
    for i in range(12): a(f"v_mov_b32 v{68+i}, 0")
    a(f"s_mov_b32 s6, 0x{F:08x}\ns_mul_i32 s4, s30, 1536\nv_add_u32 v106, s4, v105")
    a(f"s_lshl_b32 s4, s24, 8\ns_add_u32 s4, s4, {CB}\ns_add_u32 s66, s50, s4\ns_addc_u32 s67, s51, 0")
    a(f"s_lshl_b32 s4, s24, 2\ns_add_u32 s4, s4, 128\ns_add_u32 s70, s48, s4\ns_addc_u32 s71, s49, 0")
    a("s_waitcnt vmcnt(8)")
    a("s_mov_b32 exec_hi, 0xffff")
    def unp(d,s): return f"v_lshlrev_b32 v{d}, 16, v{s}\nv_and_b32 v{d+1}, 0xffff0000, v{s}\nv_lshlrev_b32 v{d+2}, 16, v{s+1}\nv_and_b32 v{d+3}, 0xffff0000, v{s+1}"
    for i in range(SPW):
        a(unp(140,110+2*(i//2))); a(unp(144,120+2*i)); a(unp(148,130+2*i))
        c=152+8*i
        for j in range(4): a(f"v_mul_f32 v{144+j}, v{140+j}, v{144+j}")
        for j in range(4): a(f"v_mul_f32 v{c+j}, s6, v{144+j}")
        for j in range(4): a(f"v_mul_f32_e64 v{c+4+j}, -v{c+j}, v{148+j}")
        a(f"ds_write_b128 v106, v[{c}:{c+3}] offset:{i*1536}\nds_write_b128 v106, v[{c+4}:{c+7}] offset:{i*1536+768}")
    a("s_mov_b32 exec_hi, -1")
    a("s_waitcnt lgkmcnt(0)\ns_barrier")
    a(f"s_mul_i32 s31, s3, {SLOT}\ns_add_u32 s31, s31, {PART}")
    a(f"{L('coef')}:")
    a("s_mul_i32 s30, s62, 1536\nv_add_u32 v84, s30, v101")
    for j in range(3): a(f"ds_read_b128 v[{28+4*j}:{31+4*j}], v84 offset:{j*256}")
    for j in range(3): a(f"ds_read_b128 v[{88+4*j}:{91+4*j}], v84 offset:{768+j*256}")
    a("s_waitcnt lgkmcnt(0)")
    a("v_pk_add_f32 v[88:89], v[88:89], v[90:91]\nv_pk_add_f32 v[92:93], v[92:93], v[94:95]\nv_pk_add_f32 v[96:97], v[96:97], v[98:99]")
    a("v_pk_add_f32 v[88:89], v[88:89], v[92:93]\nv_pk_add_f32 v[88:89], v[88:89], v[96:97]\nv_add_f32 v40, v88, v89")
    a(f"{L('tile')}:")
    a("s_lshl_b32 s4, s58, 4\ns_add_u32 s4, s4, s60")
    if il: a(f"s_lshr_b32 s5, s58, 11\ns_mul_i32 s5, s5, {(NR-1)*32768}\ns_add_u32 s4, s4, s5")
    a("s_mul_i32 s54, s4, 768\ns_lshl_b32 s4, s4, 1\ns_sub_u32 s5, s59, 1")
    a("s_cmp_lg_u32 s59, 0\ns_cselect_b32 s56, s57, 0\ns_cselect_b32 s4, s4, s57")
    a("v_min_u32 v107, s5, v3\nv_lshl_add_u32 v107, v107, 5, v2\nv_add_u32 v107, s4, v107")
    if not nosc: a("buffer_load_short_d16_hi v82, v107, s[16:19], 0 offen nt\nbuffer_load_short_d16_hi v83, v107, s[20:23], 0 offen nt")
    a(f"s_cmp_lg_u32 s3, 0\ns_cbranch_scc1 {L('it0')}")
    if dyn:
        a(f"s_cmp_lt_u32 s61, {NST-2}\ns_cbranch_scc1 {L('w0s')}")
        a(f"s_cmp_eq_u32 s59, 0\ns_cbranch_scc1 {L('it0')}")
        a(f"s_sub_u32 s65, {R}, s58\ns_lshr_b32 s65, s65, {SH}\ns_max_u32 s65, s65, {minn}\ns_min_u32 s65, s65, {maxn}\ns_mov_b32 s64, s65")
        a(f"s_atomic_add s64, s[66:67], 0 glc\ns_branch {L('it0')}")
        a(f"{L('w0s')}:")
    a(f"s_cmp_eq_u32 s61, 0\ns_cselect_b32 s64, 1, 0\ns_cbranch_scc1 {L('w0a')}\ns_cmp_lg_u32 s61, {NST-3}\ns_cbranch_scc1 {L('it0')}")
    a(f"{L('w0a')}:\ns_atomic_add s64, s[70:71], 0 glc")
    a(f"{L('it0')}:")
    def it(u):
        tag=f"s{u}"
        w=f"s_waitcnt vmcnt({7 if (u==0 and not nosc) else 5})"
        if u<U-1:
            a(f"s_add_u32 s27, s26, {(u+1)*12288}\ns_cmp_eq_u32 s55, {u+1}\ns_cselect_b32 s27, s54, s27\ns_cselect_b32 s10, s56, s57\ns_cselect_b32 s14, s56, s57")
        else:
            a("s_mov_b32 s27, s54\ns_mov_b32 s10, s56\ns_mov_b32 s14, s56")
        for s in range(3):
            a(w)
            for i in range(4): a(f"v_cvt_f32_i32 v{42+i}, v{4+4*s+i}")
            a(ld(s,"s27"))
            a(f"v_pk_fma_f32 v[58:59], v[42:43], v[{28+4*s}:{29+4*s}], {'v[40:41]' if s==0 else 'v[58:59]'}")
            a(f"v_pk_fma_f32 v[58:59], v[44:45], v[{30+4*s}:{31+4*s}], v[58:59]")
        a("v_add_f32 v60, v58, v59")
        for s,r in ((3,8),(4,4),(5,2)):
            a(w)
            for i in range(4): a(f"v_cvt_f32_i32 v{46+4*(s-3)+i}, v{4+4*s+i}")
            a(ld(s,"s27"))
            a(f"v_add_f32_dpp v60, v60, v60 row_ror:{r} row_mask:0xf bank_mask:0xf")
        a("s_nop 1\nv_add_f32_dpp v60, v60, v60 row_ror:1 row_mask:0xf bank_mask:0xf")
        a(f"v_cmp_gt_f32 vcc, v60, v61\ns_cbranch_vccz {L(tag)}")
        a("v_mov_b32 v84, v60\nv_mov_b32 v85, v60\ns_nop 1\nv_permlane32_swap_b32 v84, v85\ns_nop 1\nv_max_f32 v84, v84, v85\nv_mov_b32 v85, v84\ns_nop 1")
        a("v_permlane16_swap_b32 v84, v85\ns_nop 1\nv_max3_f32 v84, v84, v85, v61\nv_sub_f32 v86, v61, v84\nv_exp_f32 v86, v86\nv_mov_b32 v61, v84")
        for i in range(6): a(f"v_pk_mul_f32 v[{68+2*i}:{69+2*i}], v[{68+2*i}:{69+2*i}], v[86:87] op_sel_hi:[1,0]")
        a("v_pk_mul_f32 v[62:63], v[62:63], v[86:87] op_sel_hi:[1,0]")
        a(f"{L(tag)}:")
        a("v_sub_f32 v66, v60, v61\nv_exp_f32 v66, v66\ns_nop 0")
        a(f"v_mul_f32_dpp v64, v80, v66 row_newbcast:{u} row_mask:0xf bank_mask:0xf\nv_add_f32 v62, v62, v66")
        a(f"v_fmac_f32_dpp v63, v81, v64 row_newbcast:{u} row_mask:0xf bank_mask:0xf")
        for i in range(6): a(f"v_pk_fma_f32 v[{68+2*i}:{69+2*i}], v[{46+2*i}:{47+2*i}], v[64:65], v[{68+2*i}:{69+2*i}] op_sel_hi:[1,0,1]")
        if u<U-1: a(f"s_cbranch_scc1 {L('tend')}")
    for u in range(U): it(u)
    a(f"{L('tend')}:")
    a(f"s_cmp_eq_u32 s59, 0\ns_cbranch_scc1 {L('fin')}")
    a("s_waitcnt vmcnt(6)\nv_mov_b32 v80, v82\nv_mov_b32 v81, v83")
    a("s_mov_b32 s26, s54\ns_mov_b32 s55, s59\ns_lshr_b32 s69, s58, 10")
    a(f"s_cmp_lt_u32 s61, {NST-2}\ns_cbranch_scc1 {L('stat')}")
    if dyn:
        a(f"v_mov_b32 v85, s63\ns_cmp_lg_u32 s3, 0\ns_cbranch_scc1 {L('xb')}")
        a(f"s_waitcnt lgkmcnt(0)\ns_add_u32 s64, s64, {D0}\ns_sub_i32 s4, {R}, s64\ns_max_i32 s4, s4, 0\ns_min_u32 s4, s4, s65\ns_lshl_b32 s4, s4, 16\ns_or_b32 s4, s4, s64")
        a("v_mov_b32 v84, s4\nds_write_b32 v85, v84\ns_waitcnt lgkmcnt(0)")
        a(f"{L('xb')}:\ns_barrier\nds_read_b32 v84, v85\ns_xor_b32 s63, s63, 8\ns_waitcnt lgkmcnt(0)\nv_readfirstlane_b32 s4, v84\ns_and_b32 s58, s4, 0xffff\ns_lshr_b32 s59, s4, 16")
    else:
        a("s_mov_b32 s59, 0")
    a(f"s_branch {L('nx')}")
    a(f"{L('stat')}:")
    a(f"s_add_u32 s58, s58, {TS}\ns_cmp_lg_u32 s3, 0\ns_cbranch_scc1 {L('nx')}")
    a(f"s_cmp_lg_u32 s61, 0\ns_cbranch_scc1 {L('chk')}")
    a(f"s_waitcnt lgkmcnt(0)\ns_and_b32 s64, s64, 0xffff\ns_cbranch_scc1 {L('nx')}")
    a("v_lshlrev_b32 v84, 2, v100\nv_mov_b32 v85, 0\nglobal_store_dword v84, v85, s[66:67] sc1\ns_waitcnt vmcnt(0)\ns_mov_b32 s64, 0x10000\ns_atomic_add s64, s[70:71], 0 glc\ns_waitcnt lgkmcnt(0)")
    a(f"s_branch {L('nx')}")
    a(f"{L('chk')}:\ns_cmp_lg_u32 s61, {NST-3}\ns_cbranch_scc1 {L('nx')}")
    a(f"{L('spin')}:\ns_waitcnt lgkmcnt(0)\ns_cmp_ge_u32 s64, 0x10000\ns_cbranch_scc1 {L('nx')}\ns_sleep 8\ns_mov_b32 s64, 0\ns_atomic_add s64, s[70:71], 0 glc\ns_branch {L('spin')}")
    a(f"{L('nx')}:")
    a(f"s_add_u32 s61, s61, 1\ns_cmp_eq_u32 s69, s62\ns_cbranch_scc1 {L('tile')}")
    a(f"s_xor_b32 s5, s69, s62\ns_mov_b32 s62, s69\ns_cmp_lt_u32 s5, 2\ns_cbranch_scc1 {L('coef')}")
    a(f"s_branch {L('flush')}")
    a(f"{L('fin')}:\ns_mov_b32 s72, 1")
    if ts==1: a("s_memrealtime s[92:93]")
    a(f"{L('flush')}:")
    for i in range(6): a(f"v_pk_add_f32 v[{68+2*i}:{69+2*i}], v[{68+2*i}:{69+2*i}], v[62:63] op_sel:[0,1] op_sel_hi:[1,1] neg_lo:[0,1] neg_hi:[0,1]")
    a("v_add_u32 v84, s31, v103\nv_add_u32 v85, s31, v102\nv_mov_b32 v86, s31")
    for j in range(3):
        b=68+4*j
        a(f"v_permlane32_swap_b32 v{b}, v{b+2}\nv_permlane32_swap_b32 v{b+1}, v{b+3}")
    a("s_nop 1")
    for j in range(3):
        b=68+4*j
        a(f"v_pk_add_f32 v[{b}:{b+1}], v[{b}:{b+1}], v[{b+2}:{b+3}]")
    a("s_nop 1")
    for j in range(3): a(f"v_permlane16_swap_b32 v{68+4*j}, v{69+4*j}")
    a("s_nop 1")
    for j in range(3): a(f"v_add_f32 v{88+j}, v{68+4*j}, v{69+4*j}")
    for j in range(3): a(f"ds_write_b32 v84, v{88+j} offset:{j*256}")
    a("ds_write_b32 v85, v62 offset:768\nds_write_b32 v86, v61 offset:784")
    if HPW>1:
        a(f"s_add_u32 s31, s31, {4*SLOT}")
        a(f"s_cmp_eq_u32 s72, 1\ns_cbranch_scc1 {L('tail')}")
        a("s_waitcnt lgkmcnt(0)")
        a("v_mov_b32 v61, 0xff800000\nv_mov_b32 v62, 0\nv_mov_b32 v63, 0")
        for i in range(12): a(f"v_mov_b32 v{68+i}, 0")
        a(f"s_branch {L('coef')}")
    a(f"{L('tail')}:")
    if ts==1: tsw()
    a("s_waitcnt vmcnt(0) lgkmcnt(0)\ns_barrier")
    if HPW<4: a(f"s_cmp_ge_u32 s3, {HPW}\ns_cbranch_scc1 {L('end')}")
    a(f"s_mul_i32 s4, s3, {4*SLOT}\ns_add_u32 s4, s4, {PART}\nv_mov_b32 v84, s4\nv_add_u32 v85, s4, v105")
    for w in range(4): a(f"ds_read_b32 v{4+w}, v84 offset:{w*SLOT+784}")
    for w in range(4): a(f"ds_read_b128 v[{8+4*w}:{11+4*w}], v84 offset:{w*SLOT+768}")
    for w in range(4): a(f"ds_read_b128 v[{24+4*w}:{27+4*w}], v85 offset:{w*SLOT}")
    a(f"s_mul_i32 s5, s24, {HPW}\ns_add_u32 s5, s5, s3\ns_mul_i32 s7, s5, {GW*1024}\ns_add_u32 s7, s7, {PB}\ns_add_u32 s52, s50, s7\ns_addc_u32 s53, s51, 0")
    a("s_lshl_b32 s7, s25, 10\nv_add_u32 v86, s7, v105\nv_cmp_eq_u32 vcc, 48, v100")
    a("s_waitcnt lgkmcnt(8)\nv_max_f32 v40, v4, v5\nv_max3_f32 v40, v40, v6, v7")
    for w in range(4): a(f"v_sub_f32 v{4+w}, v{4+w}, v40")
    for w in range(4): a(f"v_exp_f32 v{42+2*w}, v{4+w}")
    a("s_waitcnt lgkmcnt(4)")
    for w in range(4): a(f"v_pk_add_f32 v[{8+4*w}:{9+4*w}], v[{8+4*w}:{9+4*w}], v[{10+4*w}:{11+4*w}]")
    for w in range(4): a(f"v_add_f32 v{8+4*w}, v{8+4*w}, v{9+4*w}")
    a("v_mul_f32 v41, v42, v8\nv_fmac_f32 v41, v44, v12\nv_fmac_f32 v41, v46, v16\nv_fmac_f32 v41, v48, v20")
    a("s_waitcnt lgkmcnt(0)")
    t=52
    a(f"v_pk_mul_f32 v[{t}:{t+1}], v[24:25], v[42:43] op_sel_hi:[1,0]\nv_pk_mul_f32 v[{t+2}:{t+3}], v[26:27], v[42:43] op_sel_hi:[1,0]")
    for w in range(1,4):
        a(f"v_pk_fma_f32 v[{t}:{t+1}], v[{24+4*w}:{25+4*w}], v[{42+2*w}:{43+2*w}], v[{t}:{t+1}] op_sel_hi:[1,0,1]")
        a(f"v_pk_fma_f32 v[{t+2}:{t+3}], v[{26+4*w}:{27+4*w}], v[{42+2*w}:{43+2*w}], v[{t+2}:{t+3}] op_sel_hi:[1,0,1]")
    a(f"v_cndmask_b32 v{t}, v{t}, v40, vcc\nv_cndmask_b32 v{t+1}, v{t+1}, v41, vcc")
    a(f"s_mov_b32 exec_hi, 0x1ffff\nglobal_store_dwordx4 v86, v[{t}:{t+3}], s[52:53] {spol}")
    a("s_lshl_b32 s4, s3, 2\nv_mov_b32 v4, s4\nv_mov_b32 v5, 1\ns_mov_b64 exec, 1\ns_waitcnt vmcnt(0)")
    a("global_atomic_add v9, v4, v5, s[66:67] offset:128 sc0\ns_mov_b64 exec, -1")
    a("v_lshlrev_b32 v4, 10, v100\nv_mov_b32 v6, 0xff800000\nv_mov_b32 v7, 0\ns_waitcnt vmcnt(0)\nv_readfirstlane_b32 s4, v9")
    a(f"s_cmp_lg_u32 s4, {GW-1}\ns_cbranch_scc1 {L('end')}")
    B=GW
    a(f"s_mov_b64 exec, {hex((1<<GW)-1)}" if GW<32 else "s_mov_b32 exec_hi, 0")
    a("global_load_dwordx2 v[6:7], v4, s[52:53] offset:768 sc1")
    a("s_mov_b32 exec_lo, -1\ns_mov_b32 exec_hi, 0xffff")
    for i in range(B):
        a(f"global_load_dwordx4 v[{112+4*i}:{115+4*i}], v105, s[52:53] offset:{(i%4)*1024} sc1")
        if i%4==3 and i<B-1: a("s_add_u32 s52, s52, 4096\ns_addc_u32 s53, s53, 0")
    a("s_mov_b32 exec_hi, -1")
    a(f"s_waitcnt vmcnt({B})\nv_mov_b32 v8, v6\ns_nop 1")
    def allred(op):
        for rr in (8,4,2,1): a(f"{op}_dpp v8, v8, v8 row_ror:{rr} row_mask:0xf bank_mask:0xf\ns_nop 1")
        if GW>16: a(f"v_mov_b32 v9, v8\ns_nop 1\nv_permlane16_swap_b32 v8, v9\ns_nop 1\n{op} v8, v8, v9\ns_nop 0")
        a("v_readfirstlane_b32 s6, v8")
    allred("v_max_f32")
    a("s_nop 1\nv_subrev_f32 v6, s6, v6\nv_exp_f32 v6, v6\ns_nop 0\nv_mul_f32 v8, v6, v7\ns_nop 1")
    allred("v_add_f32")
    a("s_nop 1\nv_rcp_f32 v10, s6\nv_mov_b32 v12, 0\nv_mov_b32 v13, 0\nv_mov_b32 v14, 0\nv_mov_b32 v15, 0")
    for i in range(B): a(f"v_readlane_b32 s{56+i}, v6, {i}")
    a("s_mov_b32 exec_hi, 0xffff")
    for i in range(B):
        if i%4==0: a(f"s_waitcnt vmcnt({B-4-i})")
        sp=f"s[{56+(i&~1)}:{57+(i&~1)}]"; os_="op_sel:[0,1,0] op_sel_hi:[1,1,1]" if i&1 else "op_sel_hi:[1,0,1]"
        a(f"v_pk_fma_f32 v[12:13], v[{112+4*i}:{113+4*i}], {sp}, v[12:13] {os_}")
        a(f"v_pk_fma_f32 v[14:15], v[{114+4*i}:{115+4*i}], {sp}, v[14:15] {os_}")
    a("v_pk_mul_f32 v[12:13], v[12:13], v[10:11] op_sel_hi:[1,0]\nv_pk_mul_f32 v[14:15], v[14:15], v[10:11] op_sel_hi:[1,0]")
    a("v_cvt_pk_bf16_f32 v16, v12, v13\nv_cvt_pk_bf16_f32 v17, v14, v15")
    if il: a(f"s_mul_i32 s7, s3, {NR}\ns_add_u32 s7, s7, s24\ns_mul_i32 s7, s7, 384")
    else: a("s_mul_i32 s7, s5, 384")
    a("v_add_u32 v20, s7, v104\nglobal_store_dwordx2 v20, v[16:17], s[46:47]\ns_mov_b32 exec_hi, -1")
    a(f"{L('end')}:")
    if ts==2:
        a("s_waitcnt vmcnt(0)\ns_memrealtime s[92:93]"); tsw()
    a(f"{L('exit')}:")
    body="\n".join(o)
    src=f""".text
.globl {kn}
.p2align 8
.type {kn},@function
{kn}:
{body}
s_endpgm
.section .rodata,"a"
.p2align 6
.amdhsa_kernel {kn}
  .amdhsa_next_free_vgpr {nv}
  .amdhsa_next_free_sgpr 102
  .amdhsa_accum_offset {nv}
  .amdhsa_group_segment_fixed_size 0
  .amdhsa_kernarg_size 80
  .amdhsa_user_sgpr_count 2
  .amdhsa_user_sgpr_kernarg_segment_ptr 1
  .amdhsa_system_sgpr_workgroup_id_x 1
.end_amdhsa_kernel
"""
    return src, G, 256, LDS
def single(path, **kw):
    src,G,Bk,LDS=gen(**kw)
    open(path,'w').write(HDRC+f"; @launch grid=({G},1,1) block=({Bk},1,1) lds={LDS}\n.amdgcn_target \"amdgcn-amd-amdhsa--gfx950\"\n"+src)
def multi(tag, items):
    from build import build
    hdr=""; body=""; spec=[]
    for name,kw in items:
        chk=kw.pop('chk',2 if kw.get('ts') else 1)
        src,G,Bk,LDS=gen(kn=name+"_kernel", **kw)
        hdr+=f"; @launch kernel={name}_kernel grid=({G},1,1) block=({Bk},1,1) lds={LDS}\n"; body+=src
        spec.append(f"{name} {tag}.co {chk} 1 {name}_kernel {G} {Bk} {LDS}")
    open(tag+".s",'w').write(hdr+".amdgcn_target \"amdgcn-amd-amdhsa--gfx950\"\n"+body)
    build(tag+".s")
    open(tag+".txt",'w').write("\n".join(spec)+"\n")
if __name__=="__main__":
    exec(open(sys.argv[1]).read())
```

```python
import math, sys, struct
KN="standalone__kv_cache_quant_int4_int2_kv_with_per_channel_or_per_token_scales__decode"
def f2u(x): return struct.unpack('<I', struct.pack('<f', x))[0]
HDRC = """; Kernarg layout for this problem (80 bytes, ptrs only, base s[0:1]):
"""
def gen(kn=KN+"_kernel", GW=32, U=16, m=4, mode='A', pat=2, ts=False, ldsmin=0, pol="nt", spol="sc1", sclpol="nt", lin=False, nosc=False, il=False):
    G=256; NR=G//GW; HPW=GW//8; assert HPW>=1
    TT=16*m; step=16 if mode=='A' else 4; wstep=4 if mode=='A' else 4*m
    assert U%m==0
    NB=256//U; BPS=1024//(GW*U); assert BPS>=1 and BPS*GW*U==1024
    NS=2*HPW; SPW=max(1,NS//4)
    SLOT=800; PART=NS*1536; FLAG=PART+HPW*4*SLOT+256; LDS=max(FLAG+16, ldsmin)
    PB=4<<20
    def tokoff(u): return (u//m)*GW*TT+(u%m)*step
    BT=tokoff(U)
    F=f2u(192**-0.5*math.log2(math.e))
    o=[]; a=o.append
    L=lambda s: f"L_{s}_{kn}"
    def tsw():
        a("s_getreg_b32 s4, hwreg(HW_REG_XCC_ID)\ns_lshl_b32 s5, s2, 2\ns_add_u32 s5, s5, s3\ns_lshl_b32 s5, s5, 4\ns_waitcnt lgkmcnt(0)")
        a("v_mov_b32 v4, s90\nv_mov_b32 v5, s92\nv_mov_b32 v6, s4\nv_mov_b32 v7, s2\nv_mov_b32 v8, s5")
        a("s_mov_b64 exec, 1\nglobal_store_dwordx4 v8, v[4:7], s[50:51]\ns_mov_b64 exec, -1")
    a(f"s_cmp_ge_u32 s2, {G}\ns_cbranch_scc1 {L('exit')}")
    a("s_load_dwordx16 s[32:47], s[0:1], 0\ns_load_dwordx4 s[48:51], s[0:1], 64")
    if ts: a("s_memrealtime s[90:91]")
    a("v_lshrrev_b32 v1, 6, v0\nv_and_b32 v3, 15, v0\nv_readfirstlane_b32 s3, v1")
    a("v_bfe_u32 v5, v0, 4, 2\nv_and_b32 v100, 63, v0")
    a("v_mul_u32_u24 v1, 0x300, v5\nv_lshlrev_b32 v101, 4, v3\nv_add_u32 v1, v1, v101")
    if lin: a("v_lshlrev_b32 v1, 4, v100")
    lm=int(math.log2(m))
    a(f"v_and_b32 v6, {U-1}, v3\nv_lshrrev_b32 v7, {lm}, v6\nv_and_b32 v6, {m-1}, v6")
    a(f"v_mul_u32_u24 v7, {GW*TT}, v7\nv_mul_u32_u24 v6, {step}, v6\nv_add3_u32 v2, v7, v6, v5\nv_lshlrev_b32 v2, 1, v2")
    a("v_lshlrev_b32 v102, 2, v5\nv_add_u32 v103, v101, v102")
    a("v_lshlrev_b32 v104, 3, v100\nv_lshlrev_b32 v105, 4, v100")
    if pat==2: a(f"s_lshr_b32 s24, s2, {int(math.log2(GW))}\ns_and_b32 s25, s2, {GW-1}")
    else: a(f"s_and_b32 s24, s2, {NR-1}\ns_lshr_b32 s25, s2, {int(math.log2(NR))}")
    a(f"s_mul_i32 s26, s24, {32768 if il else HPW*32768}\ns_mul_i32 s27, s25, {TT}\ns_add_u32 s26, s26, s27\ns_mul_i32 s27, s3, {wstep}\ns_add_u32 s26, s26, s27")
    a("s_lshl_b32 s28, s26, 1\ns_mul_i32 s26, s26, 768")
    if NS>=4: a(f"s_mul_i32 s30, s3, {SPW}")
    else: a(f"s_and_b32 s30, s3, {NS-1}")
    if il: a(f"s_lshr_b32 s5, s30, 1\ns_mul_i32 s5, s5, {NR}\ns_add_u32 s5, s5, s24\ns_and_b32 s4, s30, 1\ns_lshl_b32 s6, s5, 1\ns_add_u32 s4, s4, s6\ns_mul_i32 s4, s4, 384\ns_mul_i32 s5, s5, 384")
    else: a(f"s_mul_i32 s4, s24, {NS}\ns_add_u32 s4, s4, s30\ns_lshr_b32 s5, s4, 1\ns_mul_i32 s4, s4, 384\ns_mul_i32 s5, s5, 384")
    hs=NR if il else 1
    a("v_add_u32 v6, s4, v104\nv_add_u32 v7, s5, v104")
    a("v_mov_b32 v82, 0\nv_mov_b32 v83, 0\nv_mov_b32 v80, 0\nv_mov_b32 v81, 0\nv_mov_b32 v41, 0")
    a("s_waitcnt lgkmcnt(0)")
    a("s_mov_b32 exec_hi, 0xffff")
    nq=(SPW+1)//2
    for i in range(nq): a(f"global_load_dwordx2 v[{110+2*i}:{111+2*i}], v7, s[32:33] offset:{i*384*hs}")
    for i in range(SPW):
        a(f"global_load_dwordx2 v[{120+2*i}:{121+2*i}], v6, s[38:39] offset:{(i>>1)*768*hs+(i&1)*384}")
        a(f"global_load_dwordx2 v[{130+2*i}:{131+2*i}], v6, s[40:41] offset:{(i>>1)*768*hs+(i&1)*384}")
    a("s_mov_b32 exec_hi, -1")
    for d,s,n in ((8,34,805306368),(12,36,805306368),(16,42,2097152),(20,44,2097152)):
        a(f"s_mov_b32 s{d}, s{s}\ns_and_b32 s{d+1}, s{s+1}, 0xffff\ns_mov_b32 s{d+2}, {n}\ns_mov_b32 s{d+3}, 0x20000")
    a(f"buffer_load_short_d16_hi v80, v2, s[16:19], s28 offen {sclpol}\nbuffer_load_short_d16_hi v81, v2, s[20:23], s28 offen {sclpol}")
    def ld(slot, soff):
        srd="s[8:11]" if slot<3 else "s[12:15]"
        off=(slot%3)*(1024 if lin else 256)
        return f"buffer_load_dwordx4 v[{4+4*slot}:{7+4*slot}], v1, {srd}, {soff} offen offset:{off} {pol}"
    for s in range(6): a(ld(s,"s26"))
    a("v_mov_b32 v61, 0xff800000\nv_mov_b32 v62, 0\nv_mov_b32 v63, 0")
    for i in range(12): a(f"v_mov_b32 v{68+i}, 0")
    a(f"s_mov_b32 s6, 0x{F:08x}\ns_mul_i32 s4, s30, 1536\nv_add_u32 v106, s4, v105")
    a("s_waitcnt vmcnt(8)")
    a("s_mov_b32 exec_hi, 0xffff")
    def unp(d,s): return f"v_lshlrev_b32 v{d}, 16, v{s}\nv_and_b32 v{d+1}, 0xffff0000, v{s}\nv_lshlrev_b32 v{d+2}, 16, v{s+1}\nv_and_b32 v{d+3}, 0xffff0000, v{s+1}"
    for i in range(SPW):
        a(unp(140,110+2*(i//2))); a(unp(144,120+2*i)); a(unp(148,130+2*i))
        c=152+8*i
        for j in range(4): a(f"v_mul_f32 v{144+j}, v{140+j}, v{144+j}")
        for j in range(4): a(f"v_mul_f32 v{c+j}, s6, v{144+j}")
        for j in range(4): a(f"v_mul_f32_e64 v{c+4+j}, -v{c+j}, v{148+j}")
        a(f"ds_write_b128 v106, v[{c}:{c+3}] offset:{i*1536}\nds_write_b128 v106, v[{c+4}:{c+7}] offset:{i*1536+768}")
    a("s_mov_b32 exec_hi, -1")
    a("s_waitcnt lgkmcnt(0)\ns_barrier")
    a(f"s_mov_b32 s29, 0\ns_mov_b32 s30, 0\ns_mul_i32 s31, s3, {SLOT}\ns_add_u32 s31, s31, {PART}")
    a(f"{L('coef')}:")
    a("v_add_u32 v84, s30, v101")
    for j in range(3): a(f"ds_read_b128 v[{28+4*j}:{31+4*j}], v84 offset:{j*256}")
    for j in range(3): a(f"ds_read_b128 v[{88+4*j}:{91+4*j}], v84 offset:{768+j*256}")
    a("s_add_u32 s30, s30, 1536\ns_waitcnt lgkmcnt(0)")
    a("v_pk_add_f32 v[88:89], v[88:89], v[90:91]\nv_pk_add_f32 v[92:93], v[92:93], v[94:95]\nv_pk_add_f32 v[96:97], v[96:97], v[98:99]")
    a("v_pk_add_f32 v[88:89], v[88:89], v[92:93]\nv_pk_add_f32 v[88:89], v[88:89], v[96:97]\nv_add_f32 v40, v88, v89")
    a(f"{L('blk')}:")
    if il:
        a(f"s_add_u32 s4, s29, 1\ns_and_b32 s4, s4, {2*BPS-1}\ns_cselect_b32 s4, 0, {(NR-1)*32768}\ns_add_u32 s4, s4, {BT}\ns_mul_i32 s57, s4, 768\ns_add_u32 s57, s57, s26\ns_lshl_b32 s4, s4, 1\ns_add_u32 s4, s28, s4")
    else: a(f"s_add_u32 s4, s28, {BT*2}\ns_add_u32 s57, s26, {BT*768}")
    a(f"s_cmp_lt_u32 s29, {NB-1}\ns_cselect_b32 s28, s4, s28")
    if not nosc: a(f"buffer_load_short_d16_hi v82, v2, s[16:19], s28 offen {sclpol}\nbuffer_load_short_d16_hi v83, v2, s[20:23], s28 offen {sclpol}")
    def it(u, loads, tag):
        base = 7 if (u==0 and not nosc) else 5
        def w(s): return f"s_waitcnt vmcnt({base if loads else (5-s)})"
        if loads: a(f"s_add_u32 s27, s26, {tokoff(u+1)*768}" if u<U-1 else "s_mov_b32 s27, s57")
        for s in range(3):
            a(w(s))
            for i in range(4): a(f"v_cvt_f32_i32 v{42+i}, v{4+4*s+i}")
            if loads: a(ld(s,"s27"))
            a(f"v_pk_fma_f32 v[58:59], v[42:43], v[{28+4*s}:{29+4*s}], {'v[40:41]' if s==0 else 'v[58:59]'}")
            a(f"v_pk_fma_f32 v[58:59], v[44:45], v[{30+4*s}:{31+4*s}], v[58:59]")
        a("v_add_f32 v60, v58, v59")
        for s,r in ((3,8),(4,4),(5,2)):
            a(w(s))
            for i in range(4): a(f"v_cvt_f32_i32 v{46+4*(s-3)+i}, v{4+4*s+i}")
            if loads: a(ld(s,"s27"))
            a(f"v_add_f32_dpp v60, v60, v60 row_ror:{r} row_mask:0xf bank_mask:0xf")
        a("s_nop 1\nv_add_f32_dpp v60, v60, v60 row_ror:1 row_mask:0xf bank_mask:0xf")
        a(f"v_cmp_gt_f32 vcc, v60, v61\ns_cbranch_vccz {L(tag)}")
        a("v_mov_b32 v84, v60\nv_mov_b32 v85, v60\ns_nop 1\nv_permlane32_swap_b32 v84, v85\ns_nop 1\nv_max_f32 v84, v84, v85\nv_mov_b32 v85, v84\ns_nop 1")
        a("v_permlane16_swap_b32 v84, v85\ns_nop 1\nv_max3_f32 v84, v84, v85, v61\nv_sub_f32 v86, v61, v84\nv_exp_f32 v86, v86\nv_mov_b32 v61, v84")
        for i in range(6): a(f"v_pk_mul_f32 v[{68+2*i}:{69+2*i}], v[{68+2*i}:{69+2*i}], v[86:87] op_sel_hi:[1,0]")
        a("v_pk_mul_f32 v[62:63], v[62:63], v[86:87] op_sel_hi:[1,0]")
        a(f"{L(tag)}:")
        a("v_sub_f32 v66, v60, v61\nv_exp_f32 v66, v66\ns_nop 0")
        a(f"v_mul_f32_dpp v64, v80, v66 row_newbcast:{u} row_mask:0xf bank_mask:0xf\nv_add_f32 v62, v62, v66")
        a(f"v_fmac_f32_dpp v63, v81, v64 row_newbcast:{u} row_mask:0xf bank_mask:0xf")
        for i in range(6): a(f"v_pk_fma_f32 v[{68+2*i}:{69+2*i}], v[{46+2*i}:{47+2*i}], v[64:65], v[{68+2*i}:{69+2*i}] op_sel_hi:[1,0,1]")
    for u in range(U-1): it(u, True, f"s{u}")
    a(f"s_cmp_eq_u32 s29, {NB-1}\ns_cbranch_scc1 {L('last')}")
    it(U-1, True, "sl")
    a(f"s_mov_b32 s26, s57\nv_mov_b32 v80, v82\nv_mov_b32 v81, v83\ns_add_u32 s29, s29, 1")
    a(f"s_and_b32 s4, s29, {BPS-1}\ns_cbranch_scc1 {L('blk')}") if BPS>1 else None
    a(f"s_and_b32 s4, s29, {2*BPS-1}\ns_cbranch_scc1 {L('coef')}")
    a(f"s_branch {L('flush')}")
    a(f"{L('last')}:")
    it(U-1, False, "sz")
    a("s_add_u32 s29, s29, 1")
    if ts==1: a("s_memrealtime s[92:93]")
    a(f"{L('flush')}:")
    for i in range(6): a(f"v_pk_add_f32 v[{68+2*i}:{69+2*i}], v[{68+2*i}:{69+2*i}], v[62:63] op_sel:[0,1] op_sel_hi:[1,1] neg_lo:[0,1] neg_hi:[0,1]")
    a("v_add_u32 v84, s31, v103\nv_add_u32 v85, s31, v102\nv_mov_b32 v86, s31")
    for j in range(3):
        b=68+4*j
        a(f"v_permlane32_swap_b32 v{b}, v{b+2}\nv_permlane32_swap_b32 v{b+1}, v{b+3}")
    a("s_nop 1")
    for j in range(3):
        b=68+4*j
        a(f"v_pk_add_f32 v[{b}:{b+1}], v[{b}:{b+1}], v[{b+2}:{b+3}]")
    a("s_nop 1")
    for j in range(3): a(f"v_permlane16_swap_b32 v{68+4*j}, v{69+4*j}")
    a("s_nop 1")
    for j in range(3): a(f"v_add_f32 v{88+j}, v{68+4*j}, v{69+4*j}")
    for j in range(3): a(f"ds_write_b32 v84, v{88+j} offset:{j*256}")
    a("ds_write_b32 v85, v62 offset:768\nds_write_b32 v86, v61 offset:784")
    a(f"s_add_u32 s31, s31, {4*SLOT}")
    a(f"s_cmp_eq_u32 s29, {NB}\ns_cbranch_scc1 {L('tail')}")
    a("s_waitcnt lgkmcnt(0)")
    a("v_mov_b32 v61, 0xff800000\nv_mov_b32 v62, 0\nv_mov_b32 v63, 0")
    for i in range(12): a(f"v_mov_b32 v{68+i}, 0")
    a(f"s_branch {L('coef')}")
    a(f"{L('tail')}:")
    if ts==1: tsw()
    a("s_waitcnt lgkmcnt(0)\ns_barrier")
    if HPW<4: a(f"s_cmp_ge_u32 s3, {HPW}\ns_cbranch_scc1 {L('sig')}")
    a(f"s_mul_i32 s4, s3, {4*SLOT}\ns_add_u32 s4, s4, {PART}\nv_mov_b32 v84, s4\nv_add_u32 v85, s4, v105")
    a(f"s_mul_i32 s5, s24, {HPW}\ns_add_u32 s5, s5, s3\ns_mul_i32 s7, s5, {GW}\ns_add_u32 s7, s7, s25\ns_lshl_b32 s7, s7, 10\ns_add_u32 s7, s7, {PB}\nv_add_u32 v86, s7, v105")
    a("v_cmp_eq_u32 vcc, 48, v100")
    for r in range(max(1,HPW//4)):
        ob=r*16*SLOT
        for w in range(4): a(f"ds_read_b32 v{4+w}, v84 offset:{ob+w*SLOT+784}")
        for w in range(4): a(f"ds_read_b128 v[{8+4*w}:{11+4*w}], v84 offset:{ob+w*SLOT+768}")
        for w in range(4): a(f"ds_read_b128 v[{24+4*w}:{27+4*w}], v85 offset:{ob+w*SLOT}")
        a("s_waitcnt lgkmcnt(8)\nv_max_f32 v40, v4, v5\nv_max3_f32 v40, v40, v6, v7")
        for w in range(4): a(f"v_sub_f32 v{4+w}, v{4+w}, v40")
        for w in range(4): a(f"v_exp_f32 v{42+2*w}, v{4+w}")
        a("s_waitcnt lgkmcnt(4)")
        for w in range(4): a(f"v_pk_add_f32 v[{8+4*w}:{9+4*w}], v[{8+4*w}:{9+4*w}], v[{10+4*w}:{11+4*w}]")
        for w in range(4): a(f"v_add_f32 v{8+4*w}, v{8+4*w}, v{9+4*w}")
        a("v_mul_f32 v41, v42, v8\nv_fmac_f32 v41, v44, v12\nv_fmac_f32 v41, v46, v16\nv_fmac_f32 v41, v48, v20")
        a("s_waitcnt lgkmcnt(0)")
        t=52+4*r
        a(f"v_pk_mul_f32 v[{t}:{t+1}], v[24:25], v[42:43] op_sel_hi:[1,0]\nv_pk_mul_f32 v[{t+2}:{t+3}], v[26:27], v[42:43] op_sel_hi:[1,0]")
        for w in range(1,4):
            a(f"v_pk_fma_f32 v[{t}:{t+1}], v[{24+4*w}:{25+4*w}], v[{42+2*w}:{43+2*w}], v[{t}:{t+1}] op_sel_hi:[1,0,1]")
            a(f"v_pk_fma_f32 v[{t+2}:{t+3}], v[{26+4*w}:{27+4*w}], v[{42+2*w}:{43+2*w}], v[{t+2}:{t+3}] op_sel_hi:[1,0,1]")
        a(f"v_cndmask_b32 v{t}, v{t}, v40, vcc\nv_cndmask_b32 v{t+1}, v{t+1}, v41, vcc")
        a(f"s_mov_b32 exec_hi, 0x1ffff\nglobal_store_dwordx4 v86, v[{t}:{t+3}], s[50:51] {spol}\ns_mov_b32 exec_hi, -1")
        if r+1<HPW//4: a(f"v_add_u32 v86, {4*GW*1024}, v86")
    a(f"{L('sig')}:")
    a("s_waitcnt vmcnt(0)\ns_barrier")
    a(f"v_mov_b32 v87, {FLAG}")
    a(f"s_cmp_lg_u32 s3, 0\ns_cbranch_scc1 {L('wait')}")
    a(f"s_lshl_b32 s4, s24, 2\nv_mov_b32 v4, s4\nv_mov_b32 v5, 1\ns_mov_b64 exec, 1")
    a("global_atomic_add v6, v4, v5, s[48:49] sc0\ns_waitcnt vmcnt(0)\nds_write_b32 v87, v6\ns_waitcnt lgkmcnt(0)\ns_mov_b64 exec, -1")
    a(f"{L('wait')}:")
    a("s_barrier\nds_read_b32 v6, v87\ns_waitcnt lgkmcnt(0)\nv_readfirstlane_b32 s4, v6")
    a(f"s_cmp_lg_u32 s4, {GW-1}\ns_cbranch_scc1 {L('end')}")
    if HPW<4: a(f"s_cmp_ge_u32 s3, {HPW}\ns_cbranch_scc1 {L('end')}")
    B=min(GW,32)
    a(f"s_mul_i32 s5, s24, {HPW}\ns_add_u32 s5, s5, s3")
    for r in range(max(1,HPW//4)):
        a(f"s_mul_i32 s7, s5, {GW*1024}\ns_add_u32 s7, s7, {PB}\ns_add_u32 s52, s50, s7\ns_addc_u32 s53, s51, 0")
        a(f"v_lshlrev_b32 v4, 10, v100\nv_mov_b32 v6, 0xff800000\nv_mov_b32 v7, 0")
        if GW<64: a(f"s_mov_b64 exec, {hex((1<<GW)-1)}" if GW<32 else "s_mov_b32 exec_hi, 0")
        a("global_load_dwordx2 v[6:7], v4, s[52:53] offset:768 sc1")
        a("s_mov_b32 exec_lo, -1\ns_mov_b32 exec_hi, 0xffff")
        for bt in range(GW//B):
            for i in range(B):
                a(f"global_load_dwordx4 v[{112+4*i}:{115+4*i}], v105, s[52:53] offset:{(i%4)*1024} sc1")
                if i%4==3: a("s_add_u32 s52, s52, 4096\ns_addc_u32 s53, s53, 0")
            if bt==0:
                a("s_mov_b32 exec_hi, -1")
                a(f"s_waitcnt vmcnt({B})\nv_mov_b32 v8, v6\ns_nop 1")
                for rr in (8,4,2,1): a(f"v_max_f32_dpp v8, v8, v8 row_ror:{rr} row_mask:0xf bank_mask:0xf\ns_nop 1")
                a("v_mov_b32 v9, v8\ns_nop 1\nv_permlane32_swap_b32 v8, v9\ns_nop 1\nv_max_f32 v8, v8, v9\nv_mov_b32 v9, v8\ns_nop 1\nv_permlane16_swap_b32 v8, v9\ns_nop 1\nv_max_f32 v8, v8, v9")
                a("v_sub_f32 v6, v6, v8\nv_exp_f32 v6, v6\ns_nop 0\nv_mul_f32 v8, v6, v7\ns_nop 1")
                for rr in (8,4,2,1): a(f"v_add_f32_dpp v8, v8, v8 row_ror:{rr} row_mask:0xf bank_mask:0xf\ns_nop 1")
                a("v_mov_b32 v9, v8\ns_nop 1\nv_permlane32_swap_b32 v8, v9\ns_nop 1\nv_add_f32 v8, v8, v9\nv_mov_b32 v9, v8\ns_nop 1\nv_permlane16_swap_b32 v8, v9\ns_nop 1\nv_add_f32 v8, v8, v9")
                a("v_rcp_f32 v10, v8\nv_mov_b32 v12, 0\nv_mov_b32 v13, 0\nv_mov_b32 v14, 0\nv_mov_b32 v15, 0")
            for i in range(B): a(f"v_readlane_b32 s{56+i}, v6, {bt*B+i}")
            a("s_mov_b32 exec_hi, 0xffff")
            for i in range(B):
                if i%4==0: a(f"s_waitcnt vmcnt({B-4-i})")
                sp=f"s[{56+(i&~1)}:{57+(i&~1)}]"; os_="op_sel:[0,1,0] op_sel_hi:[1,1,1]" if i&1 else "op_sel_hi:[1,0,1]"
                a(f"v_pk_fma_f32 v[12:13], v[{112+4*i}:{113+4*i}], {sp}, v[12:13] {os_}")
                a(f"v_pk_fma_f32 v[14:15], v[{114+4*i}:{115+4*i}], {sp}, v[14:15] {os_}")
        a("v_pk_mul_f32 v[12:13], v[12:13], v[10:11] op_sel_hi:[1,0]\nv_pk_mul_f32 v[14:15], v[14:15], v[10:11] op_sel_hi:[1,0]")
        a(f"v_cvt_pk_bf16_f32 v{16+2*r}, v12, v13\nv_cvt_pk_bf16_f32 v{17+2*r}, v14, v15")
        if il: a(f"s_add_u32 s7, s3, {4*r}\ns_mul_i32 s7, s7, {NR}\ns_add_u32 s7, s7, s24\ns_mul_i32 s7, s7, 384")
        else: a("s_mul_i32 s7, s5, 384")
        a(f"v_add_u32 v{20+r}, s7, v104\nglobal_store_dwordx2 v{20+r}, v[{16+2*r}:{17+2*r}], s[46:47]")
        a("s_mov_b32 exec_hi, -1\ns_add_u32 s5, s5, 4")
    a(f"{L('end')}:")
    if ts==2:
        a("s_waitcnt vmcnt(0)\ns_memrealtime s[92:93]"); tsw()
    a(f"{L('exit')}:")
    body="\n".join(o)
    src=f""".text
.globl {kn}
.p2align 8
.type {kn},@function
{kn}:
{body}
s_endpgm
.section .rodata,"a"
.p2align 6
.amdhsa_kernel {kn}
  .amdhsa_next_free_vgpr 256
  .amdhsa_next_free_sgpr 102
  .amdhsa_accum_offset 256
  .amdhsa_group_segment_fixed_size 0
  .amdhsa_kernarg_size 80
  .amdhsa_user_sgpr_count 2
  .amdhsa_user_sgpr_kernarg_segment_ptr 1
  .amdhsa_system_sgpr_workgroup_id_x 1
.end_amdhsa_kernel
"""
    return src, G, 256, LDS
def single(path, **kw):
    src,G,Bk,LDS=gen(**kw)
    open(path,'w').write(HDRC+f"; @launch grid=({G},1,1) block=({Bk},1,1) lds={LDS}\n.amdgcn_target \"amdgcn-amd-amdhsa--gfx950\"\n"+src)
def multi(tag, items):
    from build import build
    hdr=""; body=""; spec=[]
    for name,kw in items:
        chk=kw.pop('chk',2 if kw.get('ts') else 1)
        src,G,Bk,LDS=gen(kn=name+"_kernel", **kw)
        hdr+=f"; @launch kernel={name}_kernel grid=({G},1,1) block=({Bk},1,1) lds={LDS}\n"; body+=src
        spec.append(f"{name} {tag}.co {chk} 1 {name}_kernel {G} {Bk} {LDS}")
    open(tag+".s",'w').write(hdr+".amdgcn_target \"amdgcn-amd-amdhsa--gfx950\"\n"+body)
    build(tag+".s")
    open(tag+".txt",'w').write("\n".join(spec)+"\n")
if __name__=="__main__":
    exec(open(sys.argv[1]).read())
```

```python
import gen_kern, gen2
gen_kern.single("../cand/g32i.s", GW=32, il=True)
gen_kern.single("../cand/g32iB.s", GW=32, il=True, mode='B')
gen_kern.single("../cand/g32B.s", GW=32, mode='B')
gen2.single("../cand/d32i.s", GW=32, dynu=1024, il=True)
gen2.single("../cand/d32im8.s", GW=32, dynu=1024, il=True, ms=8)
```
